```python
import torch

def _softmax(x, axis=-1):
    return torch.softmax(x, dim=axis)
def _gelu(x):
    return torch.nn.functional.gelu(x, approximate="tanh")
def _silu(x):
    return torch.nn.functional.silu(x)
def _sigmoid(x):
    return torch.sigmoid(x)
def _layernorm(x, axis=-1, eps=1e-5):
    m = x.mean(dim=axis, keepdim=True)
    v = x.var(dim=axis, keepdim=True, unbiased=False)
    return (x - m) / torch.sqrt(v + eps)
def _scatter_add(tgt, idx, src, axis=0):
    return tgt.clone().index_add_(axis, idx, src)
def _segment_sum(src, seg, n):
    out = torch.zeros((n,) + src.shape[1:], dtype=src.dtype)
    return out.index_add_(0, seg, src)
def _pad(x, pw):
    flat = tuple(v for pair in reversed(pw) for v in pair)
    return torch.nn.functional.pad(x, flat)

kernel_name = 'parallel_sum__linear_kernel_hedgehog__glu_gated_reglu__prompt'

def setup_inputs():

    _w = (lambda a: (lambda t: t.to(torch.bfloat16) if t.is_floating_point() else t)(torch.as_tensor(a)))
    def _A_setup():
        B, S, D, H = 1, 2048, 448, 16
        Dh = D // H
        return {
            "x": _w((lambda *s: torch.randn(*s, dtype=torch.bfloat16) * 0.05)(B, S, D)),
            "wqkv": _w((lambda *s: torch.randn(*s, dtype=torch.bfloat16) * 0.2)(D, 3 * D)),
            "w_phi": _w((lambda *s: torch.randn(*s, dtype=torch.bfloat16) * 0.2)(H, Dh, Dh) * (Dh ** -0.5)),
            "wo": _w((lambda *s: torch.randn(*s, dtype=torch.bfloat16) * 0.05)(D, D)),
        }
    _A_in = _A_setup()

    def _B_setup():
        B, S, D, F = 1, 2048, 448, 1792
        return {
            "x": _w((lambda *s: torch.randn(*s, dtype=torch.bfloat16) * 0.05)(B, S, D)),
            "W_gate": _w((lambda *s: torch.randn(*s, dtype=torch.bfloat16) * 0.4)(D, F) * (2.0 / D) ** 0.5),
            "W_up": _w((lambda *s: torch.randn(*s, dtype=torch.bfloat16) * 0.4)(D, F) * (2.0 / D) ** 0.5),
            "W_down": _w((lambda *s: torch.randn(*s, dtype=torch.bfloat16) * 0.4)(F, D) * (1.0 / F) ** 0.5),
        }
    _B_in = _B_setup()

    return {
        "A_x": _A_in["x"],
        "A_wqkv": _A_in["wqkv"],
        "A_w_phi": _A_in["w_phi"],
        "A_wo": _A_in["wo"],
        "B_x": _B_in["x"],
        "B_W_gate": _B_in["W_gate"],
        "B_W_up": _B_in["W_up"],
        "B_W_down": _B_in["W_down"],
    }

def reference(A_x, A_wqkv, A_w_phi, A_wo, B_x, B_W_gate, B_W_up, B_W_down):
    def _A_ref(x, wqkv, w_phi, wo):
        B, S, D = x.shape
        H = 16; Dh = D // H
        qkv = (lambda x, *d: x.permute(*d))((x @ wqkv).reshape(B, S, 3, H, Dh), 2, 0, 3, 1, 4)
        q, k, v = qkv[0], qkv[1], qkv[2]
        pq = torch.einsum("bhsd,hdf->bhsf", q, w_phi)
        pk = torch.einsum("bhsd,hdf->bhsf", k, w_phi)
        phi_q = torch.concatenate([_softmax(pq, axis=-1), _softmax(-pq, axis=-1)], axis=-1)
        phi_k = torch.concatenate([_softmax(pk, axis=-1), _softmax(-pk, axis=-1)], axis=-1)
        kv = torch.einsum("bhsf,bhsd->bhfd", phi_k, v)
        z  = torch.einsum("bhsf->bhf", phi_k)
        num = torch.einsum("bhqf,bhfd->bhqd", phi_q, kv)
        den = torch.einsum("bhqf,bhf->bhq", phi_q, z)[..., None] + 1e-6
        o = num / den
        return (lambda x, *d: x.permute(*d))(o, 0, 2, 1, 3).reshape(B, S, D) @ wo

    def _B_ref(x, W_gate, W_up, W_down):
        gate = torch.einsum("bsd,df->bsf", x, W_gate)
        up = torch.einsum("bsd,df->bsf", x, W_up)
        gate = gate * (lambda x, dt: x.to(dt))(gate > 0, gate.dtype)
        h = gate * up
        return torch.einsum("bsf,fd->bsd", h, W_down)

    x = A_x
    xn = _layernorm(x, axis=-1)
    return x + _A_ref(xn, A_wqkv, A_w_phi, A_wo) + _B_ref(xn, B_W_gate, B_W_up, B_W_down)
```

```python
import re

_REG = re.compile(r'^(-|\|)?([vs])(?:\[(\d+):(\d+)\]|(\d+))\|?$')
TRANS = ('v_exp_f32', 'v_log_f32', 'v_rcp_f32', 'v_rsq_f32', 'v_sqrt_f32', 'v_sin_f32', 'v_cos_f32')


def regs_of(op):
    op = op.strip()
    m = _REG.match(op)
    if m:
        k = m.group(2)
        if m.group(3) is not None:
            return {(k, i) for i in range(int(m.group(3)), int(m.group(4)) + 1)}
        return {(k, int(m.group(5)))}
    if op in ('vcc', 'vcc_lo', 'vcc_hi'):
        return {('s', 'vcc')}
    if op in ('exec', 'exec_lo', 'exec_hi'):
        return {('s', 'exec')}
    if op == 'm0':
        return {('s', 'm0')}
    return set()


class Ins:
    __slots__ = ('text', 'mn', 'ops', 'mods', 'defs', 'uses', 'kind', 'ws', 'blk', 'srcC', 'srcAB', 'passes', 'data')

    def __init__(self, text):
        self.text = text
        t = text.split(';')[0].strip()
        t = re.sub(r'\b(op_sel|op_sel_hi|neg_lo|neg_hi|quad_perm):\[[^\]]*\]', '', t).strip()
        parts = t.split(None, 1)
        self.mn = parts[0]
        rest = parts[1] if len(parts) > 1 else ''
        ops = [o.strip() for o in rest.split(',')] if rest else []
        mods = []
        if ops:
            last = ops[-1].split()
            ops[-1] = last[0] if last else ''
            mods = last[1:]
        self.ops = ops
        self.mods = mods
        self.blk = None
        self.ws = 1
        self.srcC = set()
        self.srcAB = set()
        self.passes = 0
        self.data = set()
        mn = self.mn
        R = [regs_of(o) for o in ops]
        allr = set().union(*R) if R else set()
        defs, uses = set(), set()
        if mn.startswith('v_mfma'):
            self.kind = 'mfma'
            defs = R[0]
            self.srcAB = R[1] | R[2]
            self.srcC = R[3]
            uses = self.srcAB | self.srcC
            self.passes = 8 if '32x32x16' in mn else 4 if '16x16x32' in mn else 2 if '4x4x4' in mn else None
            assert self.passes
        elif mn.startswith('v_'):
            self.kind = 'valu'
            if mn.startswith(('v_permlane32_swap', 'v_permlane16_swap', 'v_swap')):
                defs = allr
                uses = allr
            elif mn.startswith('v_cmpx'):
                defs = {('s', 'exec')}
                uses = allr
            elif mn.startswith('v_nop'):
                pass
            else:
                defs = R[0]
                uses = set().union(*R[1:]) if len(R) > 1 else set()
                if mn.startswith(('v_fmac', 'v_dot2c', 'v_mac', 'v_writelane')):
                    uses |= R[0]
        elif mn.startswith('ds_'):
            self.kind = 'ds'
            if mn.startswith(('ds_read', 'ds_bpermute', 'ds_permute', 'ds_swizzle')):
                defs = R[0]
                uses = set().union(*R[1:]) if len(R) > 1 else set()
            else:
                uses = allr
        elif mn.startswith(('buffer_', 'global_')):
            self.kind = 'vmem'
            if 'load' in mn:
                if 'lds' in mods:
                    uses = allr | {('s', 'm0')}
                else:
                    defs = R[0]
                    uses = set().union(*R[1:])
            elif 'atomic' in mn:
                uses = allr
                if 'sc0' in mods:
                    defs = R[0]
            else:
                uses = allr
                if mn.endswith(('x3', 'x4')):
                    self.data = R[0]
        elif mn.startswith('s_'):
            self.kind = 'salu'
            if mn == 's_nop':
                self.ws = int(ops[0]) + 1
            elif mn.startswith(('s_cmp', 's_bitcmp', 's_waitcnt', 's_barrier', 's_branch', 's_cbranch', 's_endpgm',
                                's_setprio', 's_sleep', 's_setpc')):
                uses = allr
            else:
                defs = R[0]
                uses = set().union(*R[1:]) if len(R) > 1 else set()
                if mn.startswith('s_load'):
                    self.kind = 'smem'
        else:
            raise ValueError('unknown instruction ' + text)
        self.defs, self.uses = defs, uses


def need_ws(p, c):
    n = 0
    pv = {r for r in p.defs if r[0] == 'v'}
    ps = {r for r in p.defs if r[0] == 's'}
    if p.kind == 'valu':
        if c.kind == 'mfma':
            if pv & c.uses:
                n = max(n, 2)
            if ('s', 'exec') in ps:
                n = max(n, 4)
        if c.kind == 'valu':
            if p.mn.startswith(TRANS) and (pv & (c.uses | c.defs)):
                n = max(n, 1)
            if ps & c.uses:
                n = max(n, 4 if c.mn.startswith(('v_readlane', 'v_writelane')) else 2)
            if c.mn.startswith(('v_readlane', 'v_readfirstlane')) and (pv & c.uses):
                n = max(n, 1)
            if (c.mn.startswith('v_permlane') or 'dpp' in c.mn) and (pv & c.uses):
                n = max(n, 2)
            if p.mn.startswith('v_dot') and (pv & (c.uses | c.defs)):
                same = p.mn == c.mn and not (pv & (regs_of(c.ops[1]) | regs_of(c.ops[2])))
                n = max(n, 0 if same else 3)
            if ('s', 'exec') in ps and c.mn.startswith(('v_readlane', 'v_readfirstlane', 'v_writelane', 'v_permlane')):
                n = max(n, 4)
        if c.kind in ('vmem', 'ds', 'mfma') and p.mn.startswith('v_dot') and (pv & c.uses):
            n = max(n, 3)
        if c.kind in ('vmem', 'ds') and p.mn.startswith(TRANS) and (pv & c.uses):
            n = max(n, 1)
        if c.kind == 'vmem' and (ps & c.uses):
            n = max(n, 5)
    elif p.kind == 'mfma':
        P = p.passes
        full = {2: 5, 4: 8, 8: 12}[P]
        if c.kind == 'mfma':
            if pv & c.srcAB:
                n = max(n, full)
            if pv & c.srcC:
                if pv == c.srcC and c.passes == P:
                    n = max(n, 2 if P == 2 else 0)
                else:
                    n = max(n, {2: 4, 4: 6, 8: 10}[P])
            if (pv & c.defs) and not (pv & c.srcC):
                n = max(n, full)
        elif c.kind in ('valu', 'vmem', 'ds'):
            if pv & (c.uses | c.defs):
                n = max(n, full)
            if p.srcC & c.defs:
                n = max(n, {2: 1, 4: 3, 8: 7}[P])
    elif p.kind == 'vmem':
        if p.data & c.defs:
            n = max(n, 2)
    elif p.kind == 'salu':
        if ('s', 'm0') in ps and ('s', 'm0') in c.uses and c.kind in ('vmem', 'ds'):
            n = max(n, 1)
    return n


class Asm:
    def __init__(self):
        self.out = []
        self.hist = []
        self.lg = []
        self.vm = []
        self.blk = None
        self.closed = set()
        self.nblk = 0
        self.nlab = 0
        self.auto = True

    def raw(self, s):
        self.out.append(s)

    def comment(self, s):
        self.out.append('    ; ' + s)

    def newlabel(self, base='L'):
        self.nlab += 1
        return '%s_%d' % (base, self.nlab)

    def label(self, name):
        self.out.append(name + ':')

    def _count_younger(self, q, i):
        n = 0
        for e in q[i + 1:]:
            if e[1] is None or e[1] == q[i][1] or e[1] == self.blk:
                n += 1
        return n

    def _emit(self, ins):
        dist = 0
        need = 0
        for p in reversed(self.hist[-40:]):
            w = need_ws(p, ins)
            if w:
                d = 0
                idx = len(self.hist) - 1
                while self.hist[idx] is not p:
                    q = self.hist[idx]
                    if q.blk is None or q.blk == p.blk or q.blk == self.blk:
                        d += q.ws
                    idx -= 1
                need = max(need, w - d)
        while need > 0:
            k = min(need, 8)
            nop = Ins('s_nop %d' % (k - 1))
            nop.blk = self.blk
            self.out.append(nop)
            self.hist.append(nop)
            need -= k
        ins.blk = self.blk
        self.out.append(ins)
        self.hist.append(ins)

    def _retire(self, q, n):
        if self.blk is not None:
            for i, e in enumerate(q):
                if sum(1 for _ in q[i + 1:]) >= n and self._count_younger(q, i) >= n:
                    e[3].add(self.blk)
            return
        keep = []
        for i, e in enumerate(q):
            if self._count_younger(q, i) >= n:
                continue
            keep.append(e)
        q[:] = keep

    def wait(self, vm=None, lg=None):
        parts = []
        if vm is not None:
            vm = min(vm, 63)
            parts.append('vmcnt(%d)' % vm)
        if lg is not None:
            lg = min(lg, 15)
            parts.append('lgkmcnt(%d)' % lg)
        self._emit(Ins('s_waitcnt ' + ' '.join(parts)))
        if vm is not None:
            self._retire(self.vm, vm)
        if lg is not None:
            self._retire(self.lg, lg)

    def _need(self, q, touched):
        best = None
        for i, e in enumerate(q):
            if self.blk is not None and self.blk in e[3]:
                continue
            if e[0] & touched:
                n = self._count_younger(q, i)
                best = n if best is None else min(best, n)
        return best

    def wait_tag(self, tag, lg=None):
        best = None
        for i, e in enumerate(self.vm):
            if e[2] == tag and not (self.blk is not None and self.blk in e[3]):
                n = self._count_younger(self.vm, i)
                best = n if best is None else min(best, n)
        if best is not None or lg is not None:
            self.wait(vm=best, lg=lg)

    def I(self, text, tag=None):
        ins = Ins(text)
        if self.auto:
            touched = ins.uses | ins.defs
            v = self._need(self.vm, touched)
            l = self._need(self.lg, touched)
            if v is not None or l is not None:
                self.wait(vm=v, lg=l)
        self._emit(ins)
        if ins.kind == 'ds':
            self.lg.append([set(ins.defs), self.blk, tag, set()])
        elif ins.kind == 'vmem':
            self.vm.append([set(ins.defs), self.blk, tag, set()])
        return ins

    def forget(self):
        self.lg = []
        self.vm = []

    def flush_hazards(self, n=12):
        while n > 0:
            k = min(n, 8)
            self._emit(Ins('s_nop %d' % (k - 1)))
            n -= k

    class _Cond:
        def __init__(self, a, br):
            self.a, self.br = a, br

        def __enter__(self):
            a = self.a
            assert a.blk is None, 'nested cond'
            self.lab = a.newlabel('SK')
            a.I('%s %s' % (self.br, self.lab))
            a.nblk += 1
            a.blk = a.nblk

        def __exit__(self, *e):
            a = self.a
            a.blk = None
            a.label(self.lab)

    def skip_if(self, br):
        return Asm._Cond(self, br)

    def check_backedge(self, start_hist_idx):
        body = self.hist[start_hist_idx:]
        worst = 0
        for ci, c in enumerate(body[:30]):
            dc = sum(q.ws for q in body[:ci] if q.blk is None or q.blk == c.blk)
            for pi in range(len(body) - 1, max(len(body) - 30, -1), -1):
                p = body[pi]
                w = need_ws(p, c)
                if w:
                    dp = sum(q.ws for q in body[pi + 1:] if q.blk is None or q.blk == p.blk)
                    worst = max(worst, w - dp - dc - 1)
        return worst

    def text(self):
        lines = []
        for o in self.out:
            lines.append('    ' + o.text if isinstance(o, Ins) else o)
        return '\n'.join(lines) + '\n'
```

```python
import sys
import os
sys.path.insert(0, os.path.dirname(os.path.abspath(__file__)))
from asmtool import Asm

NAME = 'parallel_sum__linear_kernel_hedgehog__glu_gated_reglu__prompt'
OPT = dict(fused=1, timing=0)
for arg in sys.argv[2:]:
    k, v = arg.split('=')
    OPT[k] = int(v)

SLOT = 49152
MISC = 147456
ST_OFF = 0
CS_OFF = 1024
WP_OFF = 4096
WS_KV = 0x1000000
WS_FL = 0x1100000
WS_KF = 0x1110000
WS_TM = 0x1200000
WS_SIZE = 0x10000000
BIG = 0x40000000
SPIN = 200000

sW, sTG, sBE, sTY, sG, sT, sXCD, sIDX = 's3', 's4', 's5', 's6', 's7', 's8', 's9', 's10'
sA, sB, sC, sD_ = 's11', 's12', 's13', 's14'
pX, pQKV, pPHI, pWO, pWG, pWU, pWD, pOUT, pDBG, pWS = 16, 18, 20, 22, 26, 28, 30, 32, 34, 36
rX, rA0, rA1, rWS, rFL, rT = 40, 44, 48, 52, 56, 60
sSt, sDn, sSlab, sStr0, sStr1, sBs0, sBs1 = 's64', 's65', 's66', 's67', 's68', 's69', 's70'
sOX, sO0, sO1, sMB, sDl, sRS, sDuty, sHook = 's71', 's72', 's73', 's74', 's75', 's76', 's77', 's78'
sWSl = 's79'
sHB = 's80'
sCnt = 's81'
sE, sF = 's82', 's83'
rWD, rWO = 84, 88
sK0, sK1, sK2, sK3 = 's92', 's93', 's94', 's95'
sTM = 96


def srd(r):
    return 's[%d:%d]' % (r, r + 3)


def vr(b, n):
    return 'v[%d:%d]' % (b, b + n - 1) if n > 1 else 'v%d' % b


vL = 1
vX0, vX1, vA00, vA01, vA10, vA11 = 2, 3, 4, 5, 6, 7
vRX = 8
vRT = 12
vS1, vS2 = 16, 17
vCS = 18
vT0, vT1, vT2, vT3 = 22, 23, 24, 25
vFLo, vFLv = 26, 27
vPF = 28
vDB = 29
vNMU, vR = 30, 31
vR2, vC = 32, 33
vHo = 34
vPO = 35
FB = [40, 60]
ACC = 80
vE = 144


def acc(t):
    return ACC + 16 * t


a = Asm()
I = a.I


def mk_srd(r, p, nrec):
    I('s_mov_b32 s%d, s%d' % (r, p))
    I('s_mov_b32 s%d, s%d' % (r + 1, p + 1))
    I('s_mov_b32 s%d, 0x%x' % (r + 2, nrec))
    I('s_mov_b32 s%d, 0x00020000' % (r + 3))


def csel2(dst, x, y):
    I('s_mov_b32 %s, %d' % (dst, x))
    I('s_cselect_b32 %s, %s, %d' % (dst, dst, y))


def f32(x):
    import struct
    return '0x%08x' % struct.unpack('<I', struct.pack('<f', x))[0]


def stamp(k):
    if not OPT['timing']:
        return
    I('s_memtime s[%d:%d]' % (sTM, sTM + 1))
    a.raw('    s_waitcnt lgkmcnt(0)')
    I('s_lshl_b32 %s, s2, 3' % sE)
    I('s_add_u32 %s, %s, %s' % (sE, sE, sW))
    I('s_lshl_b32 %s, %s, 6' % (sE, sE))
    I('s_add_u32 %s, %s, 0x%x' % (sE, sE, WS_TM + 4 * k))
    I('v_mov_b32 v254, s%d' % sTM)
    I('v_mov_b32 v255, 0')
    I('s_mov_b64 exec, 1')
    I('buffer_store_dword v254, v255, %s, %s offen' % (srd(rWS), sE))
    I('s_mov_b64 exec, -1')


def prologue():
    I('s_cmp_ge_u32 s2, 256')
    I('s_cbranch_scc1 L_END')
    I('s_load_dwordx16 s[16:31], s[0:1], 0')
    I('s_load_dwordx4 s[32:35], s[0:1], 64')
    I('s_load_dwordx2 s[36:37], s[0:1], 80')
    I('v_lshrrev_b32 v2, 6, v0')
    I('v_and_b32 v%d, 63, v0' % vL)
    I('v_readfirstlane_b32 %s, v2' % sW)
    I('s_and_b32 %s, s2, 7' % sXCD)
    I('s_lshr_b32 %s, s2, 3' % sIDX)
    I('s_and_b32 %s, %s, 3' % (sG, sXCD))
    I('s_lshr_b32 %s, %s, 2' % (sT, sXCD))
    I('s_lshl_b32 %s, %s, 3' % (sT, sT))
    I('s_and_b32 %s, %s, 7' % (sA, sIDX))
    I('s_add_u32 %s, %s, %s' % (sT, sT, sA))
    I('s_lshr_b32 %s, %s, 3' % (sTY, sIDX))
    I('s_lshl_b32 %s, %s, 1' % (sB, sTY))
    I('s_add_u32 %s, %s, %s' % (sSlab, sA, sB))
    I('s_sub_u32 %s, %s, 7' % (sA, sSlab))
    I('s_cmp_ge_u32 %s, 7' % sSlab)
    I('s_cselect_b32 %s, %s, %s' % (sSlab, sA, sSlab))
    I('s_and_b32 %s, %s, 3' % (sTG, sW))
    I('s_lshr_b32 %s, %s, 2' % (sBE, sW))
    l3, l4, l7 = 10, 11, 12
    I('v_lshrrev_b32 v%d, 3, v%d' % (l3, vL))
    I('v_lshrrev_b32 v%d, 4, v%d' % (l4, vL))
    I('v_and_b32 v%d, 7, v%d' % (l7, vL))
    I('s_lshl_b32 %s, %s, 7' % (sA, sT))
    I('s_lshl_b32 %s, %s, 4' % (sB, sW))
    I('s_add_u32 %s, %s, %s' % (sA, sA, sB))
    I('v_add_u32 v13, %s, v%d' % (sA, l3))
    I('v_mul_u32_u24 v13, 896, v13')
    I('v_xor_b32 v14, v%d, v%d' % (l7, l4))
    I('v_lshlrev_b32 v14, 4, v14')
    I('v_add_u32 v%d, v13, v14' % vX0)
    I('v_xor_b32 v14, 64, v14')
    I('v_add_u32 v%d, v13, v14' % vX1)
    I('v_add_u32 v%d, %d, v%d' % (vX1, 8 * 896 - 1024, vX1))
    I('s_lshr_b32 %s, %s, 1' % (sA, sW))
    I('s_lshl_b32 %s, %s, 4' % (sA, sA))
    I('s_and_b32 %s, %s, 1' % (sB, sW))
    I('v_lshrrev_b32 v13, 5, v%d' % vL)
    I('v_lshlrev_b32 v13, 3, v13')
    I('v_and_b32 v14, 3, v%d' % l3)
    I('v_add3_u32 v13, v13, v14, %s' % sA)
    I('v_mul_u32_u24 v13, 3584, v13')
    I('v_and_b32 v14, 2, v14')
    I('v_lshrrev_b32 v15, 1, v%d' % l7)
    I('v_sub_u32 v15, v15, v14')
    I('v_subrev_u32 v15, %s, v15' % sB)
    I('v_and_b32 v15, 3, v15')
    I('v_lshlrev_b32 v15, 5, v15')
    I('v_and_b32 v14, 1, v%d' % vL)
    I('v_lshlrev_b32 v14, 4, v14')
    I('v_add3_u32 v16, v13, v14, v15')
    I('s_lshl_b32 %s, %s, 3' % (sA, sW))
    I('v_add_u32 v13, %s, v%d' % (sA, l4))
    I('v_mul_u32_u24 v13, 2688, v13')
    I('v_lshlrev_b32 v14, 2, v%d' % l4)
    I('v_sub_u32 v14, v%d, v14' % vL)
    I('v_and_b32 v14, 15, v14')
    I('v_lshl_add_u32 v17, v14, 4, v13')
    I('v_mov_b32 v13, 0x%x' % BIG)
    I('v_cmp_le_u32 vcc, 14, v14')
    I('v_cndmask_b32 v17, v17, v13, vcc')
    a.raw('    s_waitcnt lgkmcnt(0)')
    mk_srd(rX, pX, 2048 * 896)
    mk_srd(rWS, pWS, WS_SIZE)
    I('s_cmp_eq_u32 %s, 0' % sB)
    I('s_cselect_b32 s%d, s%d, s%d' % (rT, pWG, pWU))
    I('s_cselect_b32 s%d, s%d, s%d' % (rT + 1, pWG + 1, pWU + 1))
    I('s_mul_i32 %s, %s, 7' % (sA, sG))
    I('s_mul_i32 %s, %s, 3' % (sB, sTY))
    I('s_min_u32 %s, %s, 6' % (sB, sB))
    I('s_add_u32 %s, %s, %s' % (sA, sA, sB))
    I('s_lshl_b32 %s, %s, 2' % (sK0, sA))
    I('s_lshl_b32 %s, %s, 7' % (sA, sA))
    I('s_mul_i32 %s, %s, 224' % (sB, sG))
    I('s_cmp_eq_u32 %s, 2' % sTY)
    I('s_cselect_b32 s%d, s%d, s%d' % (rA0, pQKV, rT))
    I('s_cselect_b32 s%d, s%d, s%d' % (rA0 + 1, pQKV + 1, rT + 1))
    csel2('s%d' % (rA0 + 2), 448 * 2688, 448 * 3584)
    I('s_mov_b32 s%d, 0x00020000' % (rA0 + 3))
    csel2(sStr0, 64 * 2688, 64 * 3584)
    csel2(sC, 4 * 2688 - 1024, 4 * 3584 - 1024)
    I('s_cselect_b64 vcc, -1, 0')
    I('s_add_u32 %s, %s, 1792' % (sD_, sB))
    I('s_cmp_eq_u32 %s, 2' % sTY)
    I('s_cselect_b32 %s, %s, %s' % (sBs0, sD_, sA))
    I('v_cndmask_b32 v%d, v16, v17, vcc' % vA00)
    I('v_add_u32 v%d, %s, v%d' % (vA01, sC, vA00))
    I('s_add_u32 %s, %s, 896' % (sD_, sB))
    I('s_cmp_eq_u32 %s, 2' % sTY)
    I('s_cselect_b32 %s, %s, %s' % (sD_, sD_, sB))
    I('s_add_u32 %s, %s, 128' % (sA, sA))
    I('s_cmp_ge_u32 %s, 2' % sTY)
    I('s_cselect_b32 s%d, s%d, s%d' % (rA1, pQKV, rT))
    I('s_cselect_b32 s%d, s%d, s%d' % (rA1 + 1, pQKV + 1, rT + 1))
    csel2('s%d' % (rA1 + 2), 448 * 2688, 448 * 3584)
    I('s_mov_b32 s%d, 0x00020000' % (rA1 + 3))
    csel2(sStr1, 64 * 2688, 64 * 3584)
    csel2(sC, 4 * 2688 - 1024, 4 * 3584 - 1024)
    I('s_cselect_b32 %s, %s, %s' % (sBs1, sD_, sA))
    I('s_cselect_b64 vcc, -1, 0')
    I('s_lshl_b32 %s, %s, 11' % (sMB, sW))
    I('v_cndmask_b32 v%d, v16, v17, vcc' % vA10)
    I('v_add_u32 v%d, %s, v%d' % (vA11, sC, vA10))
    I('s_mov_b32 %s, 0' % sDn)
    I('s_mov_b32 %s, 0' % sWSl)
    dma_offsets()
    for st in range(2):
        for d in dma_list(True):
            d()
        dma_advance(True)
    stamp(0)
    l31, hh, r3, c, gp = 13, 14, 15, 16, 17
    I('v_and_b32 v%d, 31, v%d' % (l31, vL))
    I('v_lshrrev_b32 v%d, 5, v%d' % (hh, vL))
    I('v_bfe_u32 v%d, v%d, 2, 2' % (r3, vL))
    I('v_and_b32 v%d, 3, v%d' % (c, vL))
    I('v_bfe_u32 v%d, v%d, 4, 1' % (gp, vL))
    I('v_bfe_u32 v18, v%d, 1, 3' % vL)
    I('v_xor_b32 v18, v18, v%d' % hh)
    I('v_lshlrev_b32 v18, 4, v18')
    I('v_lshl_add_u32 v18, v%d, 7, v18' % l31)
    I('s_lshl_b32 %s, %s, 12' % (sA, sTG))
    I('v_add_u32 v20, %s, v18' % sA)
    I('v_lshl_add_u32 v18, v%d, 2, v%d' % (hh, r3))
    I('v_lshlrev_b32 v18, 7, v18')
    I('v_lshl_add_u32 v18, v%d, 11, v18' % gp)
    I('v_lshl_add_u32 v18, v%d, 3, v18' % c)
    I('v_and_b32 v19, 2, v%d' % r3)
    I('v_add_u32 v19, v19, v%d' % gp)
    I('s_lshl_b32 %s, %s, 1' % (sA, sBE))
    I('v_add_u32 v19, %s, v19' % sA)
    for j in range(2):
        I('v_add_u32 v21, %d, v19' % j)
        I('v_and_b32 v21, 3, v21')
        I('v_lshl_add_u32 v%d, v21, 5, v18' % (22 + j))
    I('v_lshl_add_u32 v18, v%d, 3, v%d' % (hh, r3))
    I('v_lshlrev_b32 v18, 8, v18')
    I('v_lshlrev_b32 v19, 3, v%d' % c)
    I('v_lshl_add_u32 v19, v%d, 5, v19' % gp)
    I('v_lshl_add_u32 v19, v%d, 6, v19' % r3)
    I('s_mul_i32 %s, %s, 112' % (sA, sBE))
    I('v_add_u32 v19, %s, v19' % sA)
    for j in range(2):
        I('v_add_u32 v21, %d, v19' % (56 * j))
        I('v_and_b32 v21, 255, v21')
        I('v_add_u32 v%d, v21, v18' % (24 + j))
    I('s_cmp_eq_u32 %s, 2' % sTY)
    I('s_cselect_b64 vcc, -1, 0')
    for j in range(2):
        I('v_cndmask_b32 v%d, v%d, v%d, vcc' % (vRT + j, 22 + j, 24 + j))
        I('v_add_u32 v%d, 16384, v%d' % (vRT + j, vRT + j))
    I('s_cmp_ge_u32 %s, 2' % sTY)
    I('s_cselect_b64 vcc, -1, 0')
    for j in range(2):
        I('v_cndmask_b32 v%d, v%d, v%d, vcc' % (vRT + 2 + j, 22 + j, 24 + j))
        I('v_add_u32 v%d, 32768, v%d' % (vRT + 2 + j, vRT + 2 + j))
    I('v_mov_b32 v%d, v20' % vRX)
    for k in range(1, 4):
        I('v_xor_b32 v%d, %d, v20' % (vRX + k, 32 * k))
    I('v_lshlrev_b32 v%d, 4, v%d' % (vHo, vL))
    I('v_lshlrev_b32 v22, 3, v0')
    I('v_add_u32 v22, %d, v22' % MISC)
    I('v_mov_b32 v24, 0')
    I('v_mov_b32 v25, 0')
    I('ds_write_b64 v22, v[24:25]')
    mk_srd(rT, pPHI, 16 * 1568)
    I('s_cmp_lt_u32 %s, 2' % sTY)
    with a.skip_if('s_cbranch_scc1'):
        I('s_lshl_b32 %s, %s, 10' % (sA, sW))
        I('s_add_u32 m0, %s, %d' % (sA, MISC + WP_OFF))
        I('s_mul_i32 %s, %s, %d' % (sB, sG, 4 * 1568))
        I('s_add_u32 %s, %s, %s' % (sA, sA, sB))
        I('v_add_u32 v22, %s, v%d' % (sA, vHo))
        I('buffer_load_dwordx4 v22, %s, 0 offen lds' % srd(rT))
    mk_srd(rFL, pDBG, 256)
    I('s_mov_b32 %s, 99' % sHook)
    I('s_lshl_b32 %s, %s, 4' % (sA, sG))
    I('s_add_u32 %s, %s, %s' % (sA, sA, sT))
    I('s_lshl_b32 %s, %s, 2' % (sB, sA))
    I('v_mov_b32 v%d, %s' % (vFLo, sB))
    I('v_mov_b32 v%d, 1' % vFLv)
    I('s_lshl_b32 %s, %s, 3' % (sB, sTY))
    I('s_add_u32 %s, %s, %s' % (sB, sB, sW))
    I('s_cmp_lg_u32 %s, 16' % sB)
    with a.skip_if('s_cbranch_scc1'):
        I('s_mov_b32 %s, 1' % sHook)
        I('v_mov_b32 v22, 0')
        I('v_mov_b32 v23, 0')
        I('s_lshl_b32 %s, %s, 11' % (sB, sA))
        I('s_add_u32 %s, %s, 0x%x' % (sB, sB, WS_KV))
        I('buffer_store_dwordx4 v[22:25], v%d, %s, %s offen sc1' % (vHo, srd(rWS), sB))
        I('buffer_store_dwordx4 v[22:25], v%d, %s, %s offen offset:1024 sc1' % (vHo, srd(rWS), sB))
        I('s_mul_i32 %s, %s, 12*128' % (sB, sT))
        I('s_lshl_b32 %s, %s, 8' % (sC, sG))
        I('s_add_u32 %s, %s, %s' % (sC, sC, sB))
        I('s_add_u32 %s, %s, 0x%x' % (sC, sC, WS_FL))
        I('s_lshl_b32 %s, %s, 7' % (sD_, sG))
        I('s_add_u32 %s, %s, %s' % (sD_, sD_, sB))
        I('s_add_u32 %s, %s, 0x%x' % (sD_, sD_, WS_FL + 1024))
        I('s_lshl_b32 %s, %s, 7' % (sB, sA))
        I('s_add_u32 %s, %s, 0x%x' % (sB, sB, WS_KF))
        I('v_mov_b32 v21, %s' % sC)
        I('v_writelane_b32 v21, %s, 4' % sD_)
        I('v_writelane_b32 v21, %s, 5' % sD_)
        I('v_writelane_b32 v21, %s, 6' % sB)
        I('v_writelane_b32 v21, %s, 7' % sB)
        I('s_add_u32 %s, %s, 128' % (sC, sC))
        I('v_writelane_b32 v21, %s, 2' % sC)
        I('v_writelane_b32 v21, %s, 3' % sC)
        I('v_and_b32 v20, 1, v%d' % vL)
        I('v_lshl_add_u32 v21, v20, 4, v21')
        I('s_mov_b64 exec, 0xff')
        I('buffer_store_dwordx4 v[22:25], v21, %s, 0 offen sc1' % srd(rWS))
        I('s_mov_b64 exec, -1')
    I('s_lshl_b32 %s, %s, 3' % (sA, sIDX))
    I('s_add_u32 %s, %s, %s' % (sA, sA, sW))
    I('s_cmp_ge_u32 %s, 196' % sA)
    I('s_cselect_b32 s%d, s%d, s%d' % (rT, pWO, pWD))
    I('s_cselect_b32 s%d, s%d, s%d' % (rT + 1, pWO + 1, pWD + 1))
    csel2('s%d' % (rT + 2), 448 * 896, 1792 * 896)
    I('s_cselect_b32 %s, 196, 0' % sB)
    I('s_sub_u32 %s, %s, %s' % (sA, sA, sB))
    I('s_lshl_b32 %s, %s, 13' % (sA, sA))
    I('v_lshlrev_b32 v%d, 7, v%d' % (vPO, vL))
    I('v_add_u32 v%d, %s, v%d' % (vPO, sA, vPO))
    for r in list(range(vS1, vCS + 4)) + list(range(FB[1], FB[1] + 20)) + list(range(ACC, ACC + 64)):
        I('v_mov_b32 v%d, 0' % r)
    I('s_lshl_b32 %s, %s, 1' % (sA, sBE))
    I('s_add_u32 %s, %s, %s' % (sDuty, sTG, sA))
    I('s_and_b32 %s, %s, 3' % (sDuty, sDuty))
    I('s_mov_b32 %s, 0' % sRS)
    I('s_lshl_b32 %s, %s, 2' % (sA, sT))
    I('s_add_u32 %s, %s, %s' % (sA, sA, sTG))
    I('s_mul_i32 %s, %s, %d' % (sHB, sA, 144 * 1024))


def dma_offsets():
    I('s_lshl_b32 %s, %s, 7' % (sOX, sSlab))
    I('s_mul_i32 %s, %s, %s' % (sO0, sSlab, sStr0))
    I('s_add_u32 %s, %s, %s' % (sO0, sO0, sBs0))
    I('s_mul_i32 %s, %s, %s' % (sO1, sSlab, sStr1))
    I('s_add_u32 %s, %s, %s' % (sO1, sO1, sBs1))


def dma_list(four):
    def mk(area, v, r, so, first):
        def f():
            if first:
                I('s_add_u32 m0, %s, %s' % (sWSl, sMB))
                if area:
                    I('s_add_u32 m0, m0, %d' % (16384 * area))
            I('buffer_load_dwordx4 v%d, %s, %s offen %slds' % (v, srd(r), so, '' if first else 'offset:1024 '))
        return f
    L = [mk(0, vX0, rX, sOX, True), mk(0, vX1, rX, sOX, False),
         mk(1, vA00, rA0, sO0, True), mk(1, vA01, rA0, sO0, False)]
    if four:
        L += [mk(2, vA10, rA1, sO1, True), mk(2, vA11, rA1, sO1, False)]
    return L


def dma_advance(four):
    I('s_add_u32 %s, %s, 1' % (sDn, sDn))
    I('s_add_u32 %s, %s, 1' % (sSlab, sSlab))
    I('s_cmp_eq_u32 %s, 7' % sSlab)
    I('s_cselect_b32 %s, 0, %s' % (sSlab, sSlab))
    I('s_add_u32 %s, %s, %d' % (sWSl, sWSl, SLOT))
    I('s_cmp_eq_u32 %s, %d' % (sWSl, 3 * SLOT))
    I('s_cselect_b32 %s, 0, %s' % (sWSl, sWSl))
    if four:
        I('s_cmp_eq_u32 %s, 7' % sDn)
        with a.skip_if('s_cbranch_scc0'):
            I('s_mov_b32 s%d, 0' % (rA1 + 2))
            I('s_add_u32 %s, %s, 256' % (sBs0, sBs0))
            I('s_cmp_ge_u32 %s, 2' % sTY)
            I('s_cselect_b32 s%d, 0, s%d' % (rX + 2, rX + 2))
            I('s_cselect_b32 s%d, 0, s%d' % (rA0 + 2, rA0 + 2))
    else:
        I('s_cmp_eq_u32 %s, 14' % sDn)
        I('s_cselect_b32 s%d, 0, s%d' % (rX + 2, rX + 2))
        I('s_cselect_b32 s%d, 0, s%d' % (rA0 + 2, rA0 + 2))
    dma_offsets()


def reads(ks, b, nt):
    f = FB[b]
    g = [['ds_read_b128 %s, v%d' % (vr(f, 4), vRX + ks)]]
    for t in range(nt):
        g.append(['ds_read_b64_tr_b16 %s, v%d offset:%d' % (vr(f + 4 + 4 * t + 2 * s, 2), vRT + t, 4096 * ks + 1024 * s)
                  for s in range(2)])
    return g


def duties(ks, b, nt, stats):
    f = FB[b]
    if stats:
        I('s_cmp_lg_u32 %s, %d' % (sBE, ks >> 1))
        with a.skip_if('s_cbranch_scc1'):
            for i in range(0, 4, 2):
                I('v_lshlrev_b32 v%d, 16, v%d' % (vT0, f + i))
                I('v_and_b32 v%d, 0xffff0000, v%d' % (vT1, f + i))
                I('v_lshlrev_b32 v%d, 16, v%d' % (vT2, f + i + 1))
                I('v_and_b32 v%d, 0xffff0000, v%d' % (vT3, f + i + 1))
                for t in (vT0, vT1, vT2, vT3):
                    I('v_add_f32 v%d, v%d, v%d' % (vS1, vS1, t))
                    I('v_fmac_f32 v%d, v%d, v%d' % (vS2, t, t))
    I('s_cmp_lg_u32 %s, %d' % (sDuty, ks))
    with a.skip_if('s_cbranch_scc1'):
        for i in range(4):
            for t in range(nt):
                I('v_lshlrev_b32 v%d, 16, v%d' % (vT0 + t, f + 4 + 4 * t + i))
            for t in range(nt):
                I('v_add_f32 v%d, v%d, v%d' % (vCS + t, vCS + t, vT0 + t))
            for t in range(nt):
                I('v_and_b32 v%d, 0xffff0000, v%d' % (vT0 + t, f + 4 + 4 * t + i))
            for t in range(nt):
                I('v_add_f32 v%d, v%d, v%d' % (vCS + t, vCS + t, vT0 + t))


def block(ks, b, nt, stats, rd, extra):
    f = FB[b]
    rd = rd or []
    if nt == 4:
        plan = [rd[0:2], rd[2:4], rd[4:5], []]
    else:
        plan = [rd[0:2], rd[2:3]]
    extra = list(extra)
    for t in range(nt):
        I('v_mfma_f32_32x32x16_bf16 %s, %s, %s, %s' % (vr(acc(t), 16), vr(f + 4 + 4 * t, 4), vr(f, 4), vr(acc(t), 16)))
        for g in plan[t] if rd else []:
            for r in g:
                I(r)
        if extra:
            e = extra.pop(0)
            if e:
                e()
    for e in extra:
        if e:
            e()
    duties(ks, b, nt, stats)


def pass_loop(nt):
    four = nt == 4
    lab = a.newlabel('LOOP')
    I('s_mov_b32 %s, 0' % sSt)
    a.flush_hazards(4)
    a.label(lab)
    h0 = len(a.hist)
    a.forget()
    a.wait(vm=6 if four else 4, lg=0)
    I('s_barrier')
    d = dma_list(four)

    def hook():
        I('s_cmp_lg_u32 %s, %s' % (sSt, sHook))
        with a.skip_if('s_cbranch_scc1'):
            I('s_mov_b64 exec, 1')
            I('buffer_store_dword v%d, v%d, %s, 0 offen sc1' % (vFLv, vFLo, srd(rFL)))
            I('s_mov_b64 exec, -1')
        if four:
            I('s_cmp_lg_u32 %s, 3' % sSt)
            with a.skip_if('s_cbranch_scc1'):
                a.auto = False
                I('buffer_load_dword v%d, v%d, %s, 0 offen' % (vPF, vPO, srd(rT)))
                a.auto = True

    def adv():
        dma_advance(four)

    def addr():
        I('s_add_u32 %s, %s, %d' % (sRS, sRS, SLOT))
        I('s_cmp_eq_u32 %s, %d' % (sRS, 3 * SLOT))
        csel2(sDl, -2 * SLOT, SLOT)
        I('s_cselect_b32 %s, 0, %s' % (sRS, sRS))
        for r in list(range(vRX, vRX + 4)) + list(range(vRT, vRT + nt)):
            I('v_add_u32 v%d, %s, v%d' % (r, sDl, r))
    if four:
        ex = [[d[0], d[1], None, None], [d[2], d[3], None, None], [d[4], d[5], adv, hook], [None, None, None, addr]]
    else:
        ex = [[d[0], d[1]], [d[2], d[3]], [adv, hook], [None, addr]]
    block(3, 1, nt, four, reads(0, 0, nt), ex[0])
    block(0, 0, nt, four, reads(1, 1, nt), ex[1])
    block(1, 1, nt, four, reads(2, 0, nt), ex[2])
    block(2, 0, nt, four, reads(3, 1, nt), ex[3])
    I('s_add_u32 %s, %s, 1' % (sSt, sSt))
    I('s_cmp_lt_u32 %s, 7' % sSt)
    I('s_cbranch_scc1 %s' % lab)
    assert a.check_backedge(h0) <= 0, a.check_backedge(h0)
    a.vm = []
    block(3, 1, nt, four, None, [])


def reduce_stats(nt, ps):
    I('v_and_b32 v%d, 31, v%d' % (vT0, vL))
    if ps == 0:
        I('s_lshl_b32 %s, %s, 8' % (sA, sTG))
        I('s_add_u32 %s, %s, %d' % (sA, sA, MISC))
        I('v_lshl_add_u32 v%d, v%d, 3, %s' % (vT1, vT0, sA))
        I('ds_add_f32 v%d, v%d offset:%d' % (vT1, vS1, ST_OFF))
        I('ds_add_f32 v%d, v%d offset:%d' % (vT1, vS2, ST_OFF + 4))
    I('s_lshl_b32 %s, %s, 9' % (sA, sBE))
    I('s_add_u32 %s, %s, %d' % (sA, sA, MISC))
    I('v_lshl_add_u32 v%d, v%d, 2, %s' % (vT2, vT0, sA))
    for t in range(nt):
        I('ds_add_f32 v%d, v%d offset:%d' % (vT2, vCS + t, CS_OFF + 1024 * ps + 128 * t))
    a.wait(lg=0)
    I('s_barrier')
    I('v_lshrrev_b32 v%d, 5, v%d' % (vT2, vL))
    I('v_lshl_add_u32 v%d, v%d, 4, %s' % (vT2, vT2, sA))
    if ps == 0:
        I('ds_read_b64 %s, v%d offset:%d' % (vr(vS1, 2), vT1, ST_OFF))
        I('v_mul_f32 v%d, %s, v%d' % (vNMU, f32(-1.0 / 448), vS1))
        I('v_mul_f32 v%d, %s, v%d' % (vS2, f32(1.0 / 448), vS2))
        I('v_fma_f32 v%d, -v%d, v%d, v%d' % (vS2, vNMU, vNMU, vS2))
        I('v_max_f32 v%d, 0, v%d' % (vS2, vS2))
        I('v_add_f32 v%d, %s, v%d' % (vS2, f32(1e-5), vS2))
        I('v_rsq_f32 v%d, v%d' % (vR, vS2))
        I('v_rcp_f32 v%d, v%d' % (vR2, vS2))
        I('v_mul_f32 v%d, 0x3fb8aa3b, v%d' % (vC, vR))


def read_cs(t, ps, dst):
    for j in range(4):
        I('ds_read_b128 %s, v%d offset:%d' % (vr(dst + 4 * j, 4), vT2, CS_OFF + 1024 * ps + 128 * t + 32 * j))


def center(t, cs):
    for i in range(0, 16, 2):
        I('v_pk_fma_f32 %s, %s, %s, %s op_sel_hi:[1,0,1]' % (vr(acc(t) + i, 2), vr(cs + i, 2), vr(vNMU, 2), vr(acc(t) + i, 2)))


def ffn_epi(tiles, ps, kbase_imm):
    for n, t in enumerate(tiles):
        read_cs(t, ps, vE + 16 * n)
    I('s_lshl_b32 %s, %s, 1' % (sA, sBE))
    I('s_add_u32 %s, %s, %s' % (sA, sA, sK0))
    I('s_lshl_b32 %s, %s, 10' % (sA, sA))
    I('s_add_u32 %s, %s, %s' % (sA, sA, sHB))
    for n, t in enumerate(tiles):
        A = acc(t)
        center(t, vE + 16 * n)
        for i in range(8):
            I('v_max_f32 v%d, 0, v%d' % (A + i, A + i))
        for i in range(0, 8, 2):
            I('v_pk_mul_f32 %s, %s, %s op_sel_hi:[1,0]' % (vr(A + 8 + i, 2), vr(A + 8 + i, 2), vr(vR2, 2)))
        for i in range(0, 8, 2):
            I('v_pk_mul_f32 %s, %s, %s' % (vr(A + i, 2), vr(A + i, 2), vr(A + 8 + i, 2)))
        o = vE + 64 + 4 * n
        for i in range(4):
            I('v_cvt_pk_bf16_f32 v%d, v%d, v%d' % (o + i, A + 2 * i, A + 2 * i + 1))
        k = kbase_imm + 4 * (t >> 1) + (t & 1)
        I('s_add_u32 %s, %s, %d' % (sB, sA, 1024 * k))
        I('buffer_store_dwordx4 %s, v%d, %s, %s offen sc1' % (vr(o, 4), vHo, srd(rWS), sB))


def dbg_issue():
    mk_srd(rFL, pDBG, 256)
    I('v_lshlrev_b32 v%d, 2, v%d' % (vFLo, vL))
    I('buffer_load_dword v%d, v%d, %s, 0 offen sc1' % (vDB, vFLo, srd(rFL)))


def dbg_check():
    lp, done = a.newlabel('DBL'), a.newlabel('DBD')
    I('s_mov_b32 %s, %d' % (sCnt, SPIN))
    I('v_cmp_ne_u32 vcc, 0, v%d' % vDB)
    I('s_cmp_eq_u64 vcc, -1')
    I('s_cbranch_scc1 %s' % done)
    a.label(lp)
    a.auto = False
    I('s_sleep 2')
    I('buffer_load_dword v%d, v%d, %s, 0 offen sc1' % (vDB, vFLo, srd(rFL)))
    a.raw('    s_waitcnt vmcnt(0)')
    I('v_cmp_ne_u32 vcc, 0, v%d' % vDB)
    I('s_sub_u32 %s, %s, 1' % (sCnt, sCnt))
    I('s_cbranch_scc1 %s' % done)
    I('s_cmp_eq_u64 vcc, -1')
    I('s_cbranch_scc0 %s' % lp)
    a.vm.pop()
    a.auto = True
    a.label(done)


def flag_setup(p_expr_code):
    mk_srd(rFL, pWS, WS_SIZE)
    p_expr_code()
    I('s_mul_i32 %s, %s, 12' % (sB, sT))
    I('s_add_u32 %s, %s, %s' % (sA, sA, sB))
    I('s_lshl_b32 %s, %s, 7' % (sA, sA))
    I('s_lshl_b32 %s, %s, 2' % (sB, sW))
    I('s_add_u32 %s, %s, %s' % (sA, sA, sB))
    I('s_add_u32 %s, %s, 0x%x' % (sA, sA, WS_FL))
    I('v_mov_b32 v%d, %s' % (vFLo, sA))


def flag_store(val):
    I('v_mov_b32 v%d, %d' % (vFLv, val))
    I('s_mov_b64 exec, 1')
    I('buffer_store_dword v%d, v%d, %s, 0 offen sc1' % (vFLv, vFLo, srd(rFL)))
    I('s_mov_b64 exec, -1')


def load_wphi(dst):
    t = vT0
    I('v_lshrrev_b32 v%d, 5, v%d' % (t, vL))
    I('v_bfe_u32 v%d, v%d, 2, 2' % (vT1, vL))
    I('v_lshl_add_u32 v%d, v%d, 2, v%d' % (t, t, vT1))
    I('v_mul_u32_u24 v%d, 56, v%d' % (t, t))
    I('v_and_b32 v%d, 3, v%d' % (vT1, vL))
    I('v_lshl_add_u32 v%d, v%d, 3, v%d' % (t, vT1, t))
    I('v_bfe_u32 v%d, v%d, 4, 1' % (vT1, vL))
    I('v_lshl_add_u32 v%d, v%d, 5, v%d' % (t, vT1, t))
    I('s_mul_i32 %s, %s, %d' % (sA, sBE, 2 * 1568))
    I('s_add_u32 %s, %s, %d' % (sA, sA, MISC))
    I('v_add_u32 v%d, %s, v%d' % (t, sA, t))
    for h in range(2):
        for q in range(4):
            I('ds_read_b64_tr_b16 %s, v%d offset:%d' % (vr(dst + 8 * h + 2 * q, 2), t, WP_OFF + 1568 * h + 448 * q))
    I('s_mov_b32 exec_lo, 0')
    for h in range(2):
        I('v_mov_b32 v%d, 0' % (dst + 8 * h + 6))
        I('v_mov_b32 v%d, 0' % (dst + 8 * h + 7))
    I('s_mov_b32 exec_lo, -1')


def feature(t, wf, P, En, sc):
    A = acc(t)
    for i in range(8):
        I('v_cvt_pk_bf16_f32 v%d, v%d, v%d' % (En + i, A + 2 * i, A + 2 * i + 1))
    I('v_mfma_f32_32x32x16_bf16 %s, %s, %s, 0' % (vr(P, 16), vr(wf, 4), vr(En, 4)))
    I('v_mfma_f32_32x32x16_bf16 %s, %s, %s, %s' % (vr(P, 16), vr(wf + 4, 4), vr(En + 4, 4), vr(P, 16)))
    M, m, M2, m2 = sc, sc + 1, sc + 2, sc + 3
    I('v_max3_f32 v%d, v%d, v%d, v%d' % (M, P, P + 1, P + 2))
    I('v_min3_f32 v%d, v%d, v%d, v%d' % (m, P, P + 1, P + 2))
    for i in range(3, 11, 2):
        I('v_max3_f32 v%d, v%d, v%d, v%d' % (M, M, P + i, P + i + 1))
        I('v_min3_f32 v%d, v%d, v%d, v%d' % (m, m, P + i, P + i + 1))
    I('v_max_f32 v%d, v%d, v%d' % (M, M, P + 11))
    I('v_min_f32 v%d, v%d, v%d' % (m, m, P + 11))
    I('s_mov_b32 exec_hi, 0')
    for i in (12, 14):
        I('v_max3_f32 v%d, v%d, v%d, v%d' % (M, M, P + i, P + i + 1))
        I('v_min3_f32 v%d, v%d, v%d, v%d' % (m, m, P + i, P + i + 1))
    I('s_mov_b32 exec_hi, -1')
    I('v_mov_b32 v%d, v%d' % (M2, M))
    I('v_mov_b32 v%d, v%d' % (m2, m))
    I('v_permlane32_swap_b32 v%d, v%d' % (M, M2))
    I('v_permlane32_swap_b32 v%d, v%d' % (m, m2))
    I('v_max_f32 v%d, v%d, v%d' % (M, M, M2))
    I('v_min_f32 v%d, v%d, v%d' % (m, m, m2))
    I('v_mul_f32 v%d, v%d, v%d' % (M, M, vC))
    I('v_mul_f32 v%d, v%d, v%d' % (M2, m, vC))
    for i in range(0, 16, 2):
        I('v_pk_fma_f32 %s, %s, %s, %s op_sel:[0,1,0] op_sel_hi:[1,1,0] neg_lo:[1,0,0] neg_hi:[1,0,0]'
          % (vr(En + i, 2), vr(P + i, 2), vr(vR2, 2), vr(M2, 2)))
        I('v_pk_fma_f32 %s, %s, %s, %s op_sel:[0,1,0] op_sel_hi:[1,1,0] neg_lo:[0,0,1] neg_hi:[0,0,1]'
          % (vr(P + i, 2), vr(P + i, 2), vr(vR2, 2), vr(M, 2)))
    for i in range(16):
        I('v_exp_f32 v%d, v%d' % (P + i, P + i))
        I('v_exp_f32 v%d, v%d' % (En + i, En + i))
    I('s_mov_b32 exec_lo, 0')
    for i in range(12, 16):
        I('v_mov_b32 v%d, 0' % (P + i))
        I('v_mov_b32 v%d, 0' % (En + i))
    I('s_mov_b32 exec_lo, -1')
    I('v_pk_add_f32 %s, %s, %s' % (vr(sc, 2), vr(P, 2), vr(P + 2, 2)))
    I('v_pk_add_f32 %s, %s, %s' % (vr(sc + 2, 2), vr(En, 2), vr(En + 2, 2)))
    for i in range(4, 16, 2):
        I('v_pk_add_f32 %s, %s, %s' % (vr(sc, 2), vr(sc, 2), vr(P + i, 2)))
        I('v_pk_add_f32 %s, %s, %s' % (vr(sc + 2, 2), vr(sc + 2, 2), vr(En + i, 2)))
    I('v_add_f32 v%d, v%d, v%d' % (sc, sc, sc + 1))
    I('v_add_f32 v%d, v%d, v%d' % (sc + 2, sc + 2, sc + 3))
    I('v_mov_b32 v%d, v%d' % (sc + 1, sc))
    I('v_mov_b32 v%d, v%d' % (sc + 3, sc + 2))
    I('v_permlane32_swap_b32 v%d, v%d' % (sc, sc + 1))
    I('v_permlane32_swap_b32 v%d, v%d' % (sc + 2, sc + 3))
    I('v_add_f32 v%d, v%d, v%d' % (sc, sc, sc + 1))
    I('v_add_f32 v%d, v%d, v%d' % (sc + 2, sc + 2, sc + 3))
    I('v_rcp_f32 v%d, v%d' % (sc, sc))
    I('v_rcp_f32 v%d, v%d' % (sc + 2, sc + 2))
    for i in range(0, 16, 2):
        I('v_pk_mul_f32 %s, %s, %s op_sel_hi:[1,0]' % (vr(P + i, 2), vr(P + i, 2), vr(sc, 2)))
        I('v_pk_mul_f32 %s, %s, %s op_sel_hi:[1,0]' % (vr(En + i, 2), vr(En + i, 2), vr(sc + 2, 2)))


def pack8(dst, src):
    for i in range(8):
        I('v_cvt_pk_bf16_f32 v%d, v%d, v%d' % (dst + i, src + 2 * i, src + 2 * i + 1))


def epi_A0():
    WF, P, En, sc, CSB, PK = vE, vE + 16, vE + 32, vE + 48, vE + 52, FB[0]
    AD = 8
    load_wphi(WF)
    I('v_and_b32 v%d, 31, v%d' % (vT0, vL))
    I('s_lshl_b32 %s, %s, 5' % (sA, sTG))
    I('v_add_u32 v%d, %s, v%d' % (vT0, sA, vT0))
    I('v_mul_u32_u24 v%d, 192, v%d' % (vT0, vT0))
    I('v_bfe_u32 v%d, v%d, 1, 3' % (vT1, vL))
    I('v_lshrrev_b32 v%d, 5, v%d' % (vT3, vL))
    I('v_xor_b32 v%d, v%d, v%d' % (vT1, vT1, vT3))
    I('v_lshl_add_u32 v%d, v%d, 3, v%d' % (vT0, vT1, vT0))
    I('s_mul_i32 %s, %s, 49152' % (sA, sBE))
    I('v_add_u32 v%d, %s, v%d' % (AD, sA, vT0))
    for j in range(1, 4):
        I('v_xor_b32 v%d, %d, v%d' % (AD + j, 16 * j, AD))
    for h in range(2):
        read_cs(h, 0, CSB)
        read_cs(2 + h, 0, CSB + 16)
        center(h, CSB)
        A = acc(h)
        for i in range(0, 16, 2):
            I('v_pk_mul_f32 %s, %s, %s op_sel:[0,1] op_sel_hi:[1,1]' % (vr(A + i, 2), vr(A + i, 2), vr(vNMU, 2)))
        pack8(PK, A)
        I('s_mov_b32 exec_lo, 0')
        I('v_mov_b32 v%d, 0x3f80' % (PK + 6))
        I('v_mov_b32 v%d, 0' % (PK + 7))
        I('s_mov_b32 exec_lo, -1')
        for j in range(4):
            I('ds_write_b64 v%d, %s offset:%d' % (AD + j, vr(PK + 2 * j, 2), 24576 * h + 128))
        center(2 + h, CSB + 16)
        feature(2 + h, WF + 8 * h, P, En, sc)
        pack8(PK + 8, P)
        pack8(PK + 16, En)
        for j in range(4):
            I('ds_write_b64 v%d, %s offset:%d' % (AD + j, vr(PK + 8 + 2 * j, 2), 24576 * h))
            I('ds_write_b64 v%d, %s offset:%d' % (AD + j, vr(PK + 16 + 2 * j, 2), 24576 * h + 64))
    I('v_lshrrev_b32 v%d, 5, v%d' % (vT0, vL))
    I('v_bfe_u32 v%d, v%d, 2, 2' % (vT1, vL))
    I('v_lshl_add_u32 v%d, v%d, 3, v%d' % (vT3, vT0, vT1))
    I('v_mul_u32_u24 v%d, 192, v%d' % (vT3, vT3))
    I('v_lshrrev_b32 v%d, 1, v%d' % (vT1, vT1))
    I('v_lshl_add_u32 v%d, v%d, 2, v%d' % (vT0, vT0, vT1))
    I('v_bfe_u32 v%d, v%d, 4, 1' % (vT1, vL))
    I('v_and_b32 v%d, 3, v%d' % (AD, vL))
    I('v_lshl_add_u32 v%d, v%d, 2, v%d' % (vT1, vT1, AD))
    I('v_xor_b32 v%d, v%d, v%d' % (vT0, vT0, vT1))
    I('v_lshl_add_u32 v%d, v%d, 3, v%d' % (vT3, vT0, vT3))
    I('s_lshr_b32 %s, %s, 1' % (sA, sW))
    I('s_mul_i32 %s, %s, 24576' % (sA, sA))
    I('v_add_u32 v%d, %s, v%d' % (AD, sA, vT3))
    I('v_xor_b32 v%d, 16, v%d' % (AD + 1, AD))
    I('v_add_u32 v%d, %d, v%d' % (AD + 1, 4 * 192, AD + 1))
    I('s_and_b32 %s, %s, 1' % (sA, sW))
    I('s_lshl_b32 %s, %s, 6' % (sA, sA))
    I('v_add_u32 v%d, %s, v%d' % (AD + 2, sA, AD))
    I('v_add_u32 v%d, %s, v%d' % (AD + 3, sA, AD + 1))
    a.wait(lg=0)
    I('s_barrier')
    FR = vE
    for i in range(8):
        f = FR + 8 * i
        for s in range(2):
            I('ds_read_b64_tr_b16 %s, v%d offset:%d' % (vr(f + 2 * s, 2), AD + 2 + s, 3072 * i))
        for s in range(2):
            I('ds_read_b64_tr_b16 %s, v%d offset:%d' % (vr(f + 4 + 2 * s, 2), AD + s, 3072 * i + 128))
        if i >= 2:
            k = i - 2
            I('v_mfma_f32_32x32x16_bf16 %s, %s, %s, %s' % (vr(ACC, 16), vr(FR + 8 * k, 4), vr(FR + 8 * k + 4, 4),
                                                         vr(ACC, 16) if k else '0'))
    for k in (6, 7):
        I('v_mfma_f32_32x32x16_bf16 %s, %s, %s, %s' % (vr(ACC, 16), vr(FR + 8 * k, 4), vr(FR + 8 * k + 4, 4), vr(ACC, 16)))
    dbg_check()
    I('s_lshl_b32 %s, %s, 3' % (sA, sG))
    I('s_add_u32 %s, %s, %s' % (sA, sA, sW))
    I('s_lshl_b32 %s, %s, 12' % (sA, sA))
    I('s_add_u32 %s, %s, 0x%x' % (sA, sA, WS_KV))
    I('v_lshlrev_b32 v%d, 2, v%d' % (vT0, vL))
    for r in range(16):
        I('buffer_atomic_add_f32 v%d, v%d, %s, %s offen offset:%d sc1' % (ACC + r, vT0, srd(rWS), sA, 256 * r))
    mk_srd(rFL, pWS, WS_SIZE)
    I('s_lshl_b32 %s, %s, 4' % (sA, sG))
    I('s_add_u32 %s, %s, %s' % (sA, sA, sT))
    I('s_lshl_b32 %s, %s, 7' % (sA, sA))
    I('s_lshl_b32 %s, %s, 2' % (sB, sW))
    I('s_add_u32 %s, %s, %s' % (sA, sA, sB))
    I('s_add_u32 %s, %s, 0x%x' % (sA, sA, WS_KF))
    I('v_mov_b32 v%d, %s' % (vFLo, sA))
    a.wait(vm=0)
    flag_store(1)


PQ = 176
KVL = 131072


def epi_A1():
    WF, P, En, sc, CSB = vE, vE + 64, vE + 80, vE + 96, vE + 16
    ffn_epi([0, 1], 0, 0)
    load_wphi(WF)
    dbg_check()

    def p():
        I('s_add_u32 %s, %s, 8' % (sA, sG))
    flag_setup(p)
    for h in range(2):
        read_cs(2 + h, 0, CSB)
        center(2 + h, CSB)
        feature(2 + h, WF + 8 * h, P, En, sc)
        if h == 0:
            a.wait(vm=0)
            flag_store(1)
        pack8(PQ + 16 * h, P)
        pack8(PQ + 16 * h + 8, En)


def kv_poll():
    lp, done = a.newlabel('KVL'), a.newlabel('KVD')
    I('v_lshrrev_b32 v%d, 2, v%d' % (vT0, vL))
    I('v_lshlrev_b32 v%d, 7, v%d' % (vT0, vT0))
    I('v_and_b32 v%d, 3, v%d' % (vT1, vL))
    I('v_lshl_add_u32 v%d, v%d, 3, v%d' % (vT0, vT1, vT0))
    I('s_lshl_b32 %s, %s, 11' % (sA, sG))
    I('s_add_u32 %s, %s, 0x%x' % (sA, sA, WS_KF))
    I('s_mov_b32 %s, %d' % (sCnt, SPIN))
    a.wait(vm=0)
    a.label(lp)
    a.auto = False
    I('buffer_load_dwordx2 %s, v%d, %s, %s offen sc1' % (vr(vT2, 2), vT0, srd(rWS), sA))
    a.raw('    s_waitcnt vmcnt(0)')
    I('v_and_b32 v%d, v%d, v%d' % (vT2, vT2, vT3))
    I('v_cmp_ne_u32 vcc, 0, v%d' % vT2)
    I('s_sub_u32 %s, %s, 1' % (sCnt, sCnt))
    I('s_cbranch_scc1 %s' % done)
    I('s_cmp_eq_u64 vcc, -1')
    I('s_cbranch_scc1 %s' % done)
    I('s_sleep 2')
    I('s_branch %s' % lp)
    a.vm.pop()
    a.auto = True
    a.label(done)


def kv_fetch():
    I('s_lshl_b32 %s, %s, 12' % (sA, sW))
    I('s_add_u32 m0, %s, %d' % (sA, KVL))
    I('s_lshl_b32 %s, %s, 15' % (sB, sG))
    I('s_add_u32 %s, %s, %s' % (sA, sA, sB))
    I('s_add_u32 %s, %s, 0x%x' % (sA, sA, WS_KV))
    for q in range(4):
        I('buffer_load_dwordx4 v%d, %s, %s offen offset:%d sc1 lds' % (vHo, srd(rWS), sA, 1024 * q))


def o_compute(O, KR, KF):
    I('s_lshl_b32 %s, %s, 14' % (sA, sBE))
    I('s_add_u32 %s, %s, %d' % (sA, sA, KVL))
    I('v_lshl_add_u32 v%d, v%d, 2, %s' % (vT0, vL, sA))
    I('s_lshl_b32 %s, %s, 3' % (sA, sG))
    I('s_lshl_b32 %s, %s, 2' % (sB, sBE))
    I('s_add_u32 %s, %s, %s' % (sA, sA, sB))
    I('s_add_u32 %s, %s, 112' % (sA, sA))
    I('s_lshl_b32 %s, %s, 10' % (sA, sA))
    I('s_add_u32 %s, %s, %s' % (sA, sA, sHB))
    for h in range(2):
        for r in range(0, 32, 2):
            I('ds_read2st64_b32 %s, v%d offset0:%d offset1:%d' % (vr(KR + r, 2), vT0, 32 * h + r, 32 * h + r + 1))
            if r % 8 == 6 and r > 8:
                q = r // 2 - 7
                for i in range(q, q + 4):
                    I('v_cvt_pk_bf16_f32 v%d, v%d, v%d' % (KF + i, KR + 2 * i, KR + 2 * i + 1))
        for i in range(12, 16):
            I('v_cvt_pk_bf16_f32 v%d, v%d, v%d' % (KF + i, KR + 2 * i, KR + 2 * i + 1))
        for q in range(4):
            I('v_mfma_f32_32x32x16_bf16 %s, %s, %s, %s' % (vr(O, 16), vr(KF + 4 * q, 4), vr(PQ + 16 * h + 4 * q, 4),
                                                         vr(O, 16) if q else '0'))
        I('v_mov_b32 v%d, v%d' % (vT2, O + 12))
        I('v_mov_b32 v%d, v%d' % (vT3, O + 12))
        I('v_permlane32_swap_b32 v%d, v%d' % (vT3, vT2))
        I('v_add_f32 v%d, %s, v%d' % (vT2, f32(1e-6), vT2))
        I('v_rcp_f32 v%d, v%d' % (vT2, vT2))
        for i in range(0, 16, 2):
            I('v_pk_mul_f32 %s, %s, %s op_sel_hi:[1,0]' % (vr(O + i, 2), vr(O + i, 2), vr(vT2, 2)))
        pack8(KR, O)
        I('s_mov_b32 exec_lo, 0')
        I('v_mov_b32 v%d, 0' % (KR + 6))
        I('v_mov_b32 v%d, 0' % (KR + 7))
        I('s_mov_b32 exec_lo, -1')
        for q in range(2):
            I('buffer_store_dwordx4 %s, v%d, %s, %s offen offset:%d sc1' % (vr(KR + 4 * q, 4), vHo, srd(rWS), sA, 2048 * h + 1024 * q))
        if h == 0:
            KR += 8


def phase1():
    prologue()
    pass_loop(4)
    I('s_cmp_lt_u32 %s, 2' % sTY)
    with a.skip_if('s_cbranch_scc1'):
        a.raw('    s_waitcnt vmcnt(0)')
    dbg_issue()
    reduce_stats(4, 0)
    stamp(1)
    I('s_cmp_eq_u32 %s, 2' % sTY)
    I('s_cbranch_scc1 L_A0')
    I('s_cmp_eq_u32 %s, 3' % sTY)
    I('s_cbranch_scc1 L_A1')
    st = (list(a.vm), list(a.lg))
    ffn_epi([0, 1, 2, 3], 0, 0)
    dbg_check()

    def p():
        I('s_lshl_b32 %s, %s, 1' % (sA, sG))
        I('s_add_u32 %s, %s, %s' % (sA, sA, sTY))
    flag_setup(p)
    I('v_mov_b32 v%d, 1' % vFLv)
    I('s_mov_b32 %s, 1' % sHook)
    for r in list(range(vCS, vCS + 2)) + list(range(FB[1], FB[1] + 12)) + list(range(ACC, ACC + 32)):
        I('v_mov_b32 v%d, 0' % r)
    stamp(2)
    pass_loop(2)
    reduce_stats(2, 1)
    ffn_epi([0, 1], 1, 8)
    a.wait(vm=0)
    flag_store(2)
    stamp(3)
    I('s_branch L_P2')
    a.label('L_A0')
    a.vm, a.lg = list(st[0]), list(st[1])
    a.flush_hazards(4)
    epi_A0()
    stamp(3)
    I('s_branch L_P2')
    a.label('L_A1')
    a.vm, a.lg = list(st[0]), list(st[1])
    a.flush_hazards(4)
    epi_A1()
    stamp(2)
    kv_poll()
    a.wait(lg=0)
    I('s_barrier')
    kv_fetch()
    a.wait(vm=0)
    I('s_barrier')
    o_compute(ACC, FB[0], ACC + 16)
    a.wait(vm=0)
    flag_store(2)
    stamp(3)
    a.label('L_P2')
    a.forget()


def phase2(fused):
    vH1, vW0, vW1, vW1m, vPo, vPv = 2, 3, 4, 5, 6, 7
    vRH, vRW = 8, 9
    vXR = 12
    vOo = 10
    F2 = 40
    A2 = ACC
    sNT, sT64, sHF = sK1, sK2, sK3
    sKF, sKA, sKO, sH2 = sSt, sDn, sSlab, sStr0
    if not fused:
        I('s_cmp_ge_u32 s2, 224')
        I('s_cbranch_scc1 L_END2')
        I('s_load_dwordx16 s[16:31], s[0:1], 0')
        I('s_load_dwordx4 s[32:35], s[0:1], 64')
        I('s_load_dwordx2 s[36:37], s[0:1], 80')
        I('v_lshrrev_b32 v2, 6, v0')
        I('v_and_b32 v%d, 63, v0' % vL)
        I('v_readfirstlane_b32 %s, v2' % sW)
        I('s_and_b32 %s, s2, 7' % sXCD)
        I('s_lshr_b32 %s, s2, 3' % sIDX)
        I('v_lshlrev_b32 v%d, 4, v%d' % (vHo, vL))
        a.raw('    s_waitcnt lgkmcnt(0)')
        mk_srd(rWS, pWS, WS_SIZE)
    else:
        I('s_cmp_ge_u32 %s, 28' % sIDX)
        I('s_cbranch_scc1 L_END')
    mk_srd(rX, pX, 2048 * 896)
    mk_srd(rWD, pWD, 1792 * 896)
    mk_srd(rWO, pWO, 448 * 896)
    mk_srd(rT, pOUT, 2048 * 896)
    I('s_mul_i32 %s, %s, 37' % (sA, sIDX))
    I('s_lshr_b32 %s, %s, 8' % (sA, sA))
    I('s_mul_i32 %s, %s, 7' % (sB, sA))
    I('s_sub_u32 %s, %s, %s' % (sNT, sIDX, sB))
    I('s_lshl_b32 %s, %s, 2' % (sT64, sXCD))
    I('s_add_u32 %s, %s, %s' % (sT64, sT64, sA))
    I('s_and_b32 %s, %s, 1' % (sHF, sT64))
    I('s_mul_i32 %s, %s, %d' % (sH2, sT64, 2 * 144 * 1024))
    I('s_lshr_b32 %s, %s, 1' % (sA, sW))
    I('s_and_b32 %s, %s, 1' % (sB, sW))
    I('s_mul_i32 %s, %s, 28' % (sC, sA))
    I('s_mul_i32 %s, %s, 12' % (sD_, sB))
    I('s_add_u32 %s, %s, %s' % (sKF, sC, sD_))
    I('s_lshl_b32 %s, %s, 1' % (sD_, sB))
    I('s_add_u32 %s, %s, %s' % (sKA, sC, sD_))
    I('s_add_u32 %s, %s, 24' % (sKA, sKA))
    I('s_lshl_b32 %s, %s, 1' % (sKO, sW))
    I('s_lshr_b32 %s, %s, 1' % (sC, sT64))
    I('s_mul_i32 %s, %s, 12*128' % (sC, sC))
    I('s_lshl_b32 %s, %s, 3' % (sD_, sHF))
    I('s_add_u32 %s, %s, %s' % (sC, sC, sD_))
    I('s_add_u32 %s, %s, 0x%x' % (sC, sC, WS_FL))
    I('s_lshl_b32 %s, %s, 7' % (sD_, sW))
    I('s_add_u32 %s, %s, %s' % (sD_, sD_, sC))
    I('s_lshl_b32 %s, %s, 7' % (sA, sA))
    I('s_add_u32 %s, %s, %s' % (sA, sA, sC))
    I('s_lshl_b32 %s, %s, 4' % (sB, sB))
    I('s_add_u32 %s, %s, %s' % (sA, sA, sB))
    I('s_add_u32 %s, %s, 1024' % (sA, sA))
    I('v_and_b32 v20, 1, v%d' % vL)
    I('v_bfe_u32 v21, v%d, 1, 1' % vL)
    I('v_lshlrev_b32 v21, 4, v21')
    I('v_add_u32 v21, %s, v21' % sD_)
    I('v_mov_b32 v22, %s' % sA)
    I('v_cmp_gt_u32 vcc, 4, v%d' % vL)
    I('v_cndmask_b32 v21, v22, v21, vcc')
    I('v_lshl_add_u32 v%d, v20, 2, v21' % vPo)
    I('v_add_u32 v%d, %d, v%d' % (vH1, 144 * 1024 - 1024, vHo))
    I('v_lshrrev_b32 v20, 3, v%d' % vL)
    I('v_mul_u32_u24 v20, 896, v20')
    I('v_bfe_u32 v21, v%d, 4, 1' % vL)
    I('v_lshlrev_b32 v21, 2, v21')
    I('v_and_b32 v22, 7, v%d' % vL)
    I('v_xor_b32 v21, v21, v22')
    I('v_lshl_add_u32 v20, v21, 4, v20')
    I('s_lshl_b32 %s, %s, 7' % (sA, sNT))
    I('v_add_u32 v%d, %s, v20' % (vW0, sA))
    I('v_add_u32 v%d, %d, v%d' % (vW1, 8 * 896 - 1024, vW0))
    I('v_mov_b32 v20, 0x%x' % BIG)
    I('v_cmp_gt_u32 vcc, 32, v%d' % vL)
    I('v_cndmask_b32 v%d, v20, v%d, vcc' % (vW1m, vW1))
    I('s_lshl_b32 %s, %s, 11' % (sMB, sW))
    I('s_lshr_b32 %s, %s, 2' % (sA, sW))
    I('s_lshl_b32 %s, %s, 13' % (sA, sA))
    I('s_and_b32 %s, %s, 1' % (sB, sW))
    I('s_lshl_b32 %s, %s, 10' % (sC, sB))
    I('s_add_u32 %s, %s, %s' % (sC, sC, sA))
    I('v_add_u32 v%d, %s, v%d' % (vRH, sC, vHo))
    I('v_lshrrev_b32 v20, 5, v%d' % vL)
    I('v_bfe_u32 v21, v%d, 2, 2' % vL)
    I('v_lshl_add_u32 v20, v20, 2, v21')
    I('v_lshlrev_b32 v20, 7, v20')
    I('v_lshrrev_b32 v21, 1, v21')
    I('s_bfe_u32 %s, %s, 0x10001' % (sC, sW))
    I('v_xor_b32 v21, %s, v21' % sC)
    I('v_lshl_add_u32 v20, v21, 6, v20')
    I('v_bfe_u32 v21, v%d, 4, 1' % vL)
    I('v_lshl_add_u32 v20, v21, 5, v20')
    I('v_and_b32 v21, 3, v%d' % vL)
    I('v_lshl_add_u32 v20, v21, 3, v20')
    I('s_add_u32 %s, %s, 16384' % (sA, sA))
    I('v_add_u32 v%d, %s, v20' % (vRW, sA))
    I('s_lshl_b32 %s, %s, 6' % (sA, sT64))
    I('s_lshl_b32 %s, %s, 5' % (sB, sB))
    I('s_add_u32 %s, %s, %s' % (sA, sA, sB))
    I('v_and_b32 v20, 31, v%d' % vL)
    I('v_add_u32 v20, %s, v20' % sA)
    I('v_mul_u32_u24 v20, 896, v20')
    I('v_lshrrev_b32 v21, 5, v%d' % vL)
    I('v_lshl_add_u32 v20, v21, 4, v20')
    I('s_lshl_b32 %s, %s, 7' % (sA, sNT))
    I('s_lshl_b32 %s, %s, 6' % (sC, sC))
    I('s_add_u32 %s, %s, %s' % (sA, sA, sC))
    I('s_lshr_b32 %s, %s, 2' % (sB, sW))
    I('s_lshl_b32 %s, %s, 5' % (sB, sB))
    I('s_add_u32 %s, %s, %s' % (sA, sA, sB))
    I('v_add_u32 v%d, %s, v20' % (vOo, sA))
    I('buffer_load_dwordx4 %s, v%d, %s, 0 offen' % (vr(vXR, 4), vOo, srd(rX)))
    for r in range(16):
        I('v_mov_b32 v%d, 0' % (A2 + r))

    def kinfo(i):
        if i < 8:
            return ('F', i)
        if i < 10:
            return ('A', i - 8)
        if i < 14:
            return ('F', i - 2)
        return ('O', i - 14)

    need = {0: (0x0f, 1, 7), 8: (0x30, 1, 11), 10: (0x0f, 2, 7), 14: (0x30, 2, 11)}

    def poll_issue(vPv):
        I('buffer_load_dword v%d, v%d, %s, 0 offen sc1' % (vPv, vPo, srd(rWS)))

    def poll_check(mask, val, vPv):
        lp, done = a.newlabel('PL'), a.newlabel('PD')
        I('s_mov_b32 %s, %d' % (sCnt, SPIN))
        I('v_cmp_le_u32 vcc, %d, v%d' % (val, vPv))
        I('s_and_b32 %s, vcc_lo, 0x%x' % (sA, mask))
        I('s_cmp_eq_u32 %s, 0x%x' % (sA, mask))
        I('s_cbranch_scc1 %s' % done)
        a.label(lp)
        a.auto = False
        I('s_sleep 1')
        poll_issue(vPv)
        a.raw('    s_waitcnt vmcnt(0)')
        I('v_cmp_le_u32 vcc, %d, v%d' % (val, vPv))
        I('s_sub_u32 %s, %s, 1' % (sCnt, sCnt))
        I('s_cbranch_scc1 %s' % done)
        I('s_and_b32 %s, vcc_lo, 0x%x' % (sA, mask))
        I('s_cmp_eq_u32 %s, 0x%x' % (sA, mask))
        I('s_cbranch_scc0 %s' % lp)
        a.vm.pop()
        a.auto = True
        a.label(done)

    def dma(i):
        kind, j = kinfo(i)
        slot = (i % 4) * 32768
        I('s_add_u32 m0, %s, %d' % (sMB, slot + 16384))
        if kind == 'O':
            I('s_add_u32 %s, %s, %d' % (sA, sKO, j >> 1))
            I('s_mul_i32 %s, %s, %d' % (sB, sA, 28 * 896))
            if j & 1:
                I('s_add_u32 %s, %s, %d' % (sB, sB, 16 * 896))
            I('s_lshl_b32 %s, %s, 1' % (sA, sA))
            I('s_add_u32 %s, %s, %d' % (sA, sA, 112 + (j & 1)))
            r = rWO
        else:
            I('s_add_u32 %s, %s, %d' % (sA, sKF if kind == 'F' else sKA, j))
            I('s_mul_i32 %s, %s, %d' % (sB, sA, 16 * 896))
            r = rWD
        I('buffer_load_dwordx4 v%d, %s, %s offen lds' % (vW0, srd(r), sB), tag=i)
        I('buffer_load_dwordx4 v%d, %s, %s offen offset:1024 lds' % (vW1m if (kind == 'O' and j & 1) else vW1, srd(r), sB), tag=i)
        I('s_lshl_b32 %s, %s, 10' % (sE, sA))
        I('s_add_u32 %s, %s, %s' % (sE, sE, sH2))
        if fused and i in need:
            poll_check(*need[i])
        I('s_add_u32 m0, %s, %d' % (sMB, slot))
        I('buffer_load_dwordx4 v%d, %s, %s offen sc1 lds' % (vHo, srd(rWS), sE), tag=i)
        I('buffer_load_dwordx4 v%d, %s, %s offen offset:1024 sc1 lds' % (vH1, srd(rWS), sE), tag=i)

    if fused:
        poll_issue(need[0][2])
        a.wait(lg=0)
        I('s_barrier')
    for i in range(3):
        dma(i)
    for i in range(18):
        a.wait_tag(i, lg=0)
        I('s_barrier')
        slot = (i % 4) * 32768
        for q in range(4):
            f = F2 + 8 * q
            I('ds_read_b128 %s, v%d offset:%d' % (vr(f, 4), vRH, (slot + 2048 * q) & 0xffff))
            for s in range(2):
                I('ds_read_b64_tr_b16 %s, v%d offset:%d' % (vr(f + 4 + 2 * s, 2), vRW, (slot + 2048 * q + 1024 * s) & 0xffff))
        if i % 2 == 1:
            d = 65536 if i % 4 == 1 else -65536
            I('v_add_u32 v%d, %d, v%d' % (vRH, d, vRH))
            I('v_add_u32 v%d, %d, v%d' % (vRW, d, vRW))
        if fused and (i + 5) in need:
            poll_issue(need[i + 5][2])
        if i + 3 < 18:
            dma(i + 3)
        for q in range(4):
            f = F2 + 8 * q
            I('v_mfma_f32_32x32x16_bf16 %s, %s, %s, %s' % (vr(A2, 16), vr(f + 4, 4), vr(f, 4), vr(A2, 16)))
    stamp(4)
    I('s_barrier')
    I('s_lshl_b32 %s, %s, 11' % (sA, sW))
    I('v_add_u32 v20, %s, v%d' % (sA, vHo))
    I('s_xor_b32 %s, %s, 8192' % (sA, sA))
    I('v_add_u32 v21, %s, v%d' % (sA, vHo))
    I('s_cmp_lt_u32 %s, 4' % sW)
    lk1, lj = a.newlabel('K1'), a.newlabel('KJ')
    K = 24
    I('s_cbranch_scc0 %s' % lk1)
    I('ds_write_b128 v20, %s' % vr(A2 + 8, 4))
    I('ds_write_b128 v20, %s offset:1024' % vr(A2 + 12, 4))
    for r in range(8):
        I('v_mov_b32 v%d, v%d' % (K + r, A2 + r))
    I('s_branch %s' % lj)
    a.label(lk1)
    a.flush_hazards(12)
    I('ds_write_b128 v20, %s' % vr(A2, 4))
    I('ds_write_b128 v20, %s offset:1024' % vr(A2 + 4, 4))
    for r in range(8):
        I('v_mov_b32 v%d, v%d' % (K + r, A2 + 8 + r))
    a.label(lj)
    a.wait(lg=0)
    I('s_barrier')
    I('ds_read_b128 %s, v21' % vr(F2, 4))
    I('ds_read_b128 %s, v21 offset:1024' % vr(F2 + 4, 4))
    for r in range(8):
        I('v_add_f32 v%d, v%d, v%d' % (K + r, K + r, F2 + r))
    for i in range(4):
        I('v_permlane32_swap_b32 v%d, v%d' % (K + i, K + 4 + i))
    for i in range(4):
        I('v_lshlrev_b32 v%d, 16, v%d' % (F2 + 2 * i, vXR + i))
        I('v_and_b32 v%d, 0xffff0000, v%d' % (F2 + 2 * i + 1, vXR + i))
    for r in range(8):
        I('v_add_f32 v%d, v%d, v%d' % (K + r, K + r, F2 + r))
    for i in range(4):
        I('v_cvt_pk_bf16_f32 v%d, v%d, v%d' % (F2 + 8 + i, K + 2 * i, K + 2 * i + 1))
    I('buffer_store_dwordx4 %s, v%d, %s, 0 offen' % (vr(F2 + 8, 4), vOo, srd(rT)))
    stamp(5)


def kdesc(label):
    return '''.amdhsa_kernel %s
  .amdhsa_next_free_vgpr 256
  .amdhsa_next_free_sgpr 102
  .amdhsa_accum_offset 256
  .amdhsa_group_segment_fixed_size 0
  .amdhsa_kernarg_size 88
  .amdhsa_user_sgpr_count 2
  .amdhsa_user_sgpr_kernarg_segment_ptr 1
  .amdhsa_system_sgpr_workgroup_id_x 1
.end_amdhsa_kernel
''' % label


def head(label):
    return '.globl %s\n.p2align 8\n.type %s,@function\n%s:\n' % (label, label, label)


def main():
    fused = OPT['fused']
    k1 = NAME + '_kernel'
    out = '; generated by gen/gen.py (hand-designed schedule; see gen/NOTES.md)\n'
    if fused:
        out += '; @launch grid=(256,1,1) block=(512,1,1) lds=163840\n'
    else:
        out += '; @launch kernel=%s grid=(256,1,1) block=(512,1,1) lds=163840\n' % k1
        out += '; @launch kernel=p2_kernel grid=(224,1,1) block=(512,1,1) lds=163840\n'
    out += '.amdgcn_target "amdgcn-amd-amdhsa--gfx950"\n.text\n'
    a.raw(head(k1))
    phase1()
    if fused:
        phase2(True)
        a.label('L_END')
        I('s_endpgm')
    else:
        a.label('L_END')
        I('s_endpgm')
        a.raw(head('p2_kernel'))
        a.forget()
        phase2(False)
        a.label('L_END2')
        I('s_endpgm')
    out += a.text()
    out += '.section .rodata,"a"\n.p2align 6\n' + kdesc(k1)
    if not fused:
        out += '.p2align 6\n' + kdesc('p2_kernel')
    open(sys.argv[1], 'w').write(out)


main()
```

```python
import sys
import os
sys.path.insert(0, os.path.dirname(os.path.abspath(__file__)))
from asmtool import Asm

NAME = 'parallel_sum__linear_kernel_hedgehog__glu_gated_reglu__prompt'
OPT = dict(fused=1, timing=0, dbgt=0)
for arg in sys.argv[2:]:
    k, v = arg.split('=')
    OPT[k] = int(v)

SLOT = 49152
MISC = 147456
ST_OFF = 0
CS_OFF = 1024
WP_OFF = 4096
WS_KV = 0x1000000
WS_FL = 0x1100000
WS_KF = 0x1110000
WS_TM = 0x1200000
WS_SIZE = 0x10000000
BIG = 0x40000000
SPIN = 200000

sW, sTG, sBE, sTY, sG, sT, sXCD, sIDX = 's3', 's4', 's5', 's6', 's7', 's8', 's9', 's10'
sA, sB, sC, sD_ = 's11', 's12', 's13', 's14'
pX, pQKV, pPHI, pWO, pWG, pWU, pWD, pOUT, pDBG, pWS = 16, 18, 20, 22, 26, 28, 30, 32, 34, 36
rX, rA0, rA1, rWS, rFL, rT = 40, 44, 48, 52, 56, 60
sSt, sDn, sSlab, sStr0, sStr1, sBs0, sBs1 = 's64', 's65', 's66', 's67', 's68', 's69', 's70'
sOX, sO0, sO1, sMB, sDl, sRS, sDuty, sHook = 's71', 's72', 's73', 's74', 's75', 's76', 's77', 's78'
sWSl = 's79'
sHB = 's80'
sCnt = 's81'
sE, sF = 's82', 's83'
rWD, rWO = 84, 88
sK0, sK1, sK2, sK3 = 's92', 's93', 's94', 's95'
sTM = 96


def srd(r):
    return 's[%d:%d]' % (r, r + 3)


def vr(b, n):
    return 'v[%d:%d]' % (b, b + n - 1) if n > 1 else 'v%d' % b


vL = 1
vX0, vX1, vA00, vA01, vA10, vA11 = 2, 3, 4, 5, 6, 7
vRX = 8
vRT = 12
vS1, vS2 = 16, 17
vCS = 18
vT0, vT1, vT2, vT3 = 22, 23, 24, 25
vFLo, vFLv = 26, 27
vPF = 28
vDB = 29
vNMU, vR = 30, 31
vR2, vC = 32, 33
vHo = 34
vPO = 35
FB = [40, 60]
ACC = 80
vE = 144


def acc(t):
    return ACC + 16 * t


a = Asm()
I = a.I


def mk_srd(r, p, nrec):
    I('s_mov_b32 s%d, s%d' % (r, p))
    I('s_mov_b32 s%d, s%d' % (r + 1, p + 1))
    I('s_mov_b32 s%d, 0x%x' % (r + 2, nrec))
    I('s_mov_b32 s%d, 0x00020000' % (r + 3))


def csel2(dst, x, y):
    I('s_mov_b32 %s, %d' % (dst, x))
    I('s_cselect_b32 %s, %s, %d' % (dst, dst, y))


def f32(x):
    import struct
    return '0x%08x' % struct.unpack('<I', struct.pack('<f', x))[0]


sTI = 's100'


def stamp(k=None):
    if not OPT['timing']:
        return
    I('s_memtime s[%d:%d]' % (sTM, sTM + 1))
    a.raw('    s_waitcnt lgkmcnt(0)')
    I('s_mov_b64 exec, s[100:101]')
    I('v_mov_b32 v253, s%d' % sTM)
    I('s_mov_b64 exec, -1')
    I('s_lshl_b64 s[100:101], s[100:101], 1')


def stamp_flush():
    if not OPT['timing']:
        return
    I('s_lshl_b32 %s, s2, 3' % sE)
    I('s_add_u32 %s, %s, %s' % (sE, sE, sW))
    I('s_lshl_b32 %s, %s, 8' % (sE, sE))
    I('s_add_u32 %s, %s, 0x%x' % (sE, sE, WS_TM))
    I('v_lshlrev_b32 v254, 2, v%d' % vL)
    I('buffer_store_dword v253, v254, %s, %s offen' % (srd(rWS), sE))


def prologue():
    I('s_cmp_ge_u32 s2, 256')
    I('s_cbranch_scc1 L_END')
    I('s_load_dwordx16 s[16:31], s[0:1], 0')
    I('s_load_dwordx4 s[32:35], s[0:1], 64')
    I('s_load_dwordx2 s[36:37], s[0:1], 80')
    if OPT['dbgt']:
        I('s_memtime s[96:97]')
        I('s_memrealtime s[98:99]')
    if OPT['timing']:
        I('s_mov_b64 s[100:101], 1')
        I('v_mov_b32 v253, 0')
        stamp()
    I('v_lshrrev_b32 v2, 6, v0')
    I('v_and_b32 v%d, 63, v0' % vL)
    I('v_readfirstlane_b32 %s, v2' % sW)
    I('s_and_b32 %s, s2, 7' % sXCD)
    I('s_lshr_b32 %s, s2, 3' % sIDX)
    I('s_and_b32 %s, %s, 3' % (sG, sXCD))
    I('s_lshr_b32 %s, %s, 2' % (sT, sXCD))
    I('s_lshl_b32 %s, %s, 3' % (sT, sT))
    I('s_and_b32 %s, %s, 7' % (sA, sIDX))
    I('s_add_u32 %s, %s, %s' % (sT, sT, sA))
    I('s_lshr_b32 %s, %s, 3' % (sTY, sIDX))
    I('s_lshl_b32 %s, %s, 1' % (sB, sTY))
    I('s_add_u32 %s, %s, %s' % (sSlab, sA, sB))
    I('s_sub_u32 %s, %s, 7' % (sA, sSlab))
    I('s_cmp_ge_u32 %s, 7' % sSlab)
    I('s_cselect_b32 %s, %s, %s' % (sSlab, sA, sSlab))
    I('s_and_b32 %s, %s, 3' % (sTG, sW))
    I('s_lshr_b32 %s, %s, 2' % (sBE, sW))
    l3, l4, l7 = 10, 11, 12
    I('v_lshrrev_b32 v%d, 3, v%d' % (l3, vL))
    I('v_lshrrev_b32 v%d, 4, v%d' % (l4, vL))
    I('v_and_b32 v%d, 7, v%d' % (l7, vL))
    I('s_lshl_b32 %s, %s, 7' % (sA, sT))
    I('s_lshl_b32 %s, %s, 4' % (sB, sW))
    I('s_add_u32 %s, %s, %s' % (sA, sA, sB))
    I('v_add_u32 v13, %s, v%d' % (sA, l3))
    I('v_mul_u32_u24 v13, 896, v13')
    I('v_xor_b32 v14, v%d, v%d' % (l7, l4))
    I('v_lshlrev_b32 v14, 4, v14')
    I('v_add_u32 v%d, v13, v14' % vX0)
    I('v_xor_b32 v14, 64, v14')
    I('v_add_u32 v%d, v13, v14' % vX1)
    I('v_add_u32 v%d, %d, v%d' % (vX1, 8 * 896 - 1024, vX1))
    I('s_lshr_b32 %s, %s, 1' % (sA, sW))
    I('s_lshl_b32 %s, %s, 4' % (sA, sA))
    I('s_and_b32 %s, %s, 1' % (sB, sW))
    I('v_lshrrev_b32 v13, 5, v%d' % vL)
    I('v_lshlrev_b32 v13, 3, v13')
    I('v_and_b32 v14, 3, v%d' % l3)
    I('v_add3_u32 v13, v13, v14, %s' % sA)
    I('v_mul_u32_u24 v13, 3584, v13')
    I('v_and_b32 v14, 2, v14')
    I('v_lshrrev_b32 v15, 1, v%d' % l7)
    I('v_sub_u32 v15, v15, v14')
    I('v_subrev_u32 v15, %s, v15' % sB)
    I('v_and_b32 v15, 3, v15')
    I('v_lshlrev_b32 v15, 5, v15')
    I('v_and_b32 v14, 1, v%d' % vL)
    I('v_lshlrev_b32 v14, 4, v14')
    I('v_add3_u32 v16, v13, v14, v15')
    I('s_lshl_b32 %s, %s, 3' % (sA, sW))
    I('v_add_u32 v13, %s, v%d' % (sA, l4))
    I('v_mul_u32_u24 v13, 2688, v13')
    I('v_lshlrev_b32 v14, 2, v%d' % l4)
    I('v_sub_u32 v14, v%d, v14' % vL)
    I('v_and_b32 v14, 15, v14')
    I('v_lshl_add_u32 v17, v14, 4, v13')
    I('v_mov_b32 v13, 0x%x' % BIG)
    I('v_cmp_le_u32 vcc, 14, v14')
    I('v_cndmask_b32 v17, v17, v13, vcc')
    a.raw('    s_waitcnt lgkmcnt(0)')
    mk_srd(rX, pX, 2048 * 896)
    mk_srd(rWS, pWS, WS_SIZE)
    I('s_cmp_eq_u32 %s, 0' % sB)
    I('s_cselect_b32 s%d, s%d, s%d' % (rT, pWG, pWU))
    I('s_cselect_b32 s%d, s%d, s%d' % (rT + 1, pWG + 1, pWU + 1))
    I('s_mul_i32 %s, %s, 7' % (sA, sG))
    I('s_mul_i32 %s, %s, 3' % (sB, sTY))
    I('s_min_u32 %s, %s, 6' % (sB, sB))
    I('s_add_u32 %s, %s, %s' % (sA, sA, sB))
    I('s_lshl_b32 %s, %s, 2' % (sK0, sA))
    I('s_lshl_b32 %s, %s, 7' % (sA, sA))
    I('s_mul_i32 %s, %s, 224' % (sB, sG))
    I('s_cmp_eq_u32 %s, 2' % sTY)
    I('s_cselect_b32 s%d, s%d, s%d' % (rA0, pQKV, rT))
    I('s_cselect_b32 s%d, s%d, s%d' % (rA0 + 1, pQKV + 1, rT + 1))
    csel2('s%d' % (rA0 + 2), 448 * 2688, 448 * 3584)
    I('s_mov_b32 s%d, 0x00020000' % (rA0 + 3))
    csel2(sStr0, 64 * 2688, 64 * 3584)
    csel2(sC, 4 * 2688 - 1024, 4 * 3584 - 1024)
    I('s_cselect_b64 vcc, -1, 0')
    I('s_add_u32 %s, %s, 1792' % (sD_, sB))
    I('s_cmp_eq_u32 %s, 2' % sTY)
    I('s_cselect_b32 %s, %s, %s' % (sBs0, sD_, sA))
    I('v_cndmask_b32 v%d, v16, v17, vcc' % vA00)
    I('v_add_u32 v%d, %s, v%d' % (vA01, sC, vA00))
    I('s_add_u32 %s, %s, 896' % (sD_, sB))
    I('s_cmp_eq_u32 %s, 2' % sTY)
    I('s_cselect_b32 %s, %s, %s' % (sD_, sD_, sB))
    I('s_add_u32 %s, %s, 128' % (sA, sA))
    I('s_cmp_ge_u32 %s, 2' % sTY)
    I('s_cselect_b32 s%d, s%d, s%d' % (rA1, pQKV, rT))
    I('s_cselect_b32 s%d, s%d, s%d' % (rA1 + 1, pQKV + 1, rT + 1))
    csel2('s%d' % (rA1 + 2), 448 * 2688, 448 * 3584)
    I('s_mov_b32 s%d, 0x00020000' % (rA1 + 3))
    csel2(sStr1, 64 * 2688, 64 * 3584)
    csel2(sC, 4 * 2688 - 1024, 4 * 3584 - 1024)
    I('s_cselect_b32 %s, %s, %s' % (sBs1, sD_, sA))
    I('s_cselect_b64 vcc, -1, 0')
    I('s_lshl_b32 %s, %s, 11' % (sMB, sW))
    I('v_cndmask_b32 v%d, v16, v17, vcc' % vA10)
    I('v_add_u32 v%d, %s, v%d' % (vA11, sC, vA10))
    I('s_mov_b32 %s, 0' % sDn)
    I('s_mov_b32 %s, 0' % sWSl)
    dma_offsets()
    for st in range(2):
        for d in dma_list(True):
            d()
        dma_advance(True)
    stamp(0)
    l31, hh, r3, c, gp = 13, 14, 15, 16, 17
    I('v_and_b32 v%d, 31, v%d' % (l31, vL))
    I('v_lshrrev_b32 v%d, 5, v%d' % (hh, vL))
    I('v_bfe_u32 v%d, v%d, 2, 2' % (r3, vL))
    I('v_and_b32 v%d, 3, v%d' % (c, vL))
    I('v_bfe_u32 v%d, v%d, 4, 1' % (gp, vL))
    I('v_bfe_u32 v18, v%d, 1, 3' % vL)
    I('v_xor_b32 v18, v18, v%d' % hh)
    I('v_lshlrev_b32 v18, 4, v18')
    I('v_lshl_add_u32 v18, v%d, 7, v18' % l31)
    I('s_lshl_b32 %s, %s, 12' % (sA, sTG))
    I('v_add_u32 v20, %s, v18' % sA)
    I('v_lshl_add_u32 v18, v%d, 2, v%d' % (hh, r3))
    I('v_lshlrev_b32 v18, 7, v18')
    I('v_lshl_add_u32 v18, v%d, 11, v18' % gp)
    I('v_lshl_add_u32 v18, v%d, 3, v18' % c)
    I('v_and_b32 v19, 2, v%d' % r3)
    I('v_add_u32 v19, v19, v%d' % gp)
    I('s_lshl_b32 %s, %s, 1' % (sA, sBE))
    I('v_add_u32 v19, %s, v19' % sA)
    for j in range(2):
        I('v_add_u32 v21, %d, v19' % j)
        I('v_and_b32 v21, 3, v21')
        I('v_lshl_add_u32 v%d, v21, 5, v18' % (22 + j))
    I('v_lshl_add_u32 v18, v%d, 3, v%d' % (hh, r3))
    I('v_lshlrev_b32 v18, 8, v18')
    I('v_lshlrev_b32 v19, 3, v%d' % c)
    I('v_lshl_add_u32 v19, v%d, 5, v19' % gp)
    I('v_lshl_add_u32 v19, v%d, 6, v19' % r3)
    I('s_mul_i32 %s, %s, 112' % (sA, sBE))
    I('v_add_u32 v19, %s, v19' % sA)
    for j in range(2):
        I('v_add_u32 v21, %d, v19' % (56 * j))
        I('v_and_b32 v21, 255, v21')
        I('v_add_u32 v%d, v21, v18' % (24 + j))
    I('s_cmp_eq_u32 %s, 2' % sTY)
    I('s_cselect_b64 vcc, -1, 0')
    for j in range(2):
        I('v_cndmask_b32 v%d, v%d, v%d, vcc' % (vRT + j, 22 + j, 24 + j))
        I('v_add_u32 v%d, 16384, v%d' % (vRT + j, vRT + j))
    I('s_cmp_ge_u32 %s, 2' % sTY)
    I('s_cselect_b64 vcc, -1, 0')
    for j in range(2):
        I('v_cndmask_b32 v%d, v%d, v%d, vcc' % (vRT + 2 + j, 22 + j, 24 + j))
        I('v_add_u32 v%d, 32768, v%d' % (vRT + 2 + j, vRT + 2 + j))
    I('v_mov_b32 v%d, v20' % vRX)
    for k in range(1, 4):
        I('v_xor_b32 v%d, %d, v20' % (vRX + k, 32 * k))
    I('v_lshlrev_b32 v%d, 4, v%d' % (vHo, vL))
    I('v_lshlrev_b32 v22, 3, v0')
    I('v_add_u32 v22, %d, v22' % MISC)
    I('v_mov_b32 v24, 0')
    I('v_mov_b32 v25, 0')
    I('ds_write_b64 v22, v[24:25]')
    mk_srd(rT, pPHI, 16 * 1568)
    I('s_cmp_lt_u32 %s, 2' % sTY)
    with a.skip_if('s_cbranch_scc1'):
        I('s_lshl_b32 %s, %s, 10' % (sA, sW))
        I('s_add_u32 m0, %s, %d' % (sA, MISC + WP_OFF))
        I('s_mul_i32 %s, %s, %d' % (sB, sG, 4 * 1568))
        I('s_add_u32 %s, %s, %s' % (sA, sA, sB))
        I('v_add_u32 v22, %s, v%d' % (sA, vHo))
        I('buffer_load_dwordx4 v22, %s, 0 offen lds' % srd(rT))
    mk_srd(rFL, pDBG, 256)
    I('s_mov_b32 %s, 99' % sHook)
    I('s_lshl_b32 %s, %s, 4' % (sA, sG))
    I('s_add_u32 %s, %s, %s' % (sA, sA, sT))
    I('s_lshl_b32 %s, %s, 2' % (sB, sA))
    I('v_mov_b32 v%d, %s' % (vFLo, sB))
    I('v_mov_b32 v%d, 1' % vFLv)
    I('s_lshl_b32 %s, %s, 3' % (sB, sTY))
    I('s_add_u32 %s, %s, %s' % (sB, sB, sW))
    I('s_cmp_lg_u32 %s, 16' % sB)
    with a.skip_if('s_cbranch_scc1'):
        I('s_mov_b32 %s, 1' % sHook)
        I('v_mov_b32 v22, 0')
        I('v_mov_b32 v23, 0')
        I('s_lshl_b32 %s, %s, 11' % (sB, sA))
        I('s_add_u32 %s, %s, 0x%x' % (sB, sB, WS_KV))
        I('buffer_store_dwordx4 v[22:25], v%d, %s, %s offen sc1' % (vHo, srd(rWS), sB))
        I('buffer_store_dwordx4 v[22:25], v%d, %s, %s offen offset:1024 sc1' % (vHo, srd(rWS), sB))
        I('s_mul_i32 %s, %s, 12*128' % (sB, sT))
        I('s_lshl_b32 %s, %s, 8' % (sC, sG))
        I('s_add_u32 %s, %s, %s' % (sC, sC, sB))
        I('s_add_u32 %s, %s, 0x%x' % (sC, sC, WS_FL))
        I('s_lshl_b32 %s, %s, 7' % (sD_, sG))
        I('s_add_u32 %s, %s, %s' % (sD_, sD_, sB))
        I('s_add_u32 %s, %s, 0x%x' % (sD_, sD_, WS_FL + 1024))
        I('s_lshl_b32 %s, %s, 7' % (sB, sA))
        I('s_add_u32 %s, %s, 0x%x' % (sB, sB, WS_KF))
        I('v_mov_b32 v21, %s' % sC)
        I('v_writelane_b32 v21, %s, 4' % sD_)
        I('v_writelane_b32 v21, %s, 5' % sD_)
        I('v_writelane_b32 v21, %s, 6' % sB)
        I('v_writelane_b32 v21, %s, 7' % sB)
        I('s_add_u32 %s, %s, 128' % (sC, sC))
        I('v_writelane_b32 v21, %s, 2' % sC)
        I('v_writelane_b32 v21, %s, 3' % sC)
        I('v_and_b32 v20, 1, v%d' % vL)
        I('v_lshl_add_u32 v21, v20, 4, v21')
        I('s_mov_b64 exec, 0xff')
        I('buffer_store_dwordx4 v[22:25], v21, %s, 0 offen sc1' % srd(rWS))
        I('s_mov_b64 exec, -1')
    I('s_lshl_b32 %s, %s, 3' % (sA, sIDX))
    I('s_add_u32 %s, %s, %s' % (sA, sA, sW))
    I('s_cmp_ge_u32 %s, 196' % sA)
    I('s_cselect_b32 s%d, s%d, s%d' % (rT, pWO, pWD))
    I('s_cselect_b32 s%d, s%d, s%d' % (rT + 1, pWO + 1, pWD + 1))
    csel2('s%d' % (rT + 2), 448 * 896, 1792 * 896)
    I('s_cselect_b32 %s, 196, 0' % sB)
    I('s_sub_u32 %s, %s, %s' % (sA, sA, sB))
    I('s_lshl_b32 %s, %s, 13' % (sA, sA))
    I('v_lshlrev_b32 v%d, 7, v%d' % (vPO, vL))
    I('v_add_u32 v%d, %s, v%d' % (vPO, sA, vPO))
    for r in list(range(vS1, vCS + 4)) + list(range(FB[1], FB[1] + 20)) + list(range(ACC, ACC + 64)):
        I('v_mov_b32 v%d, 0' % r)
    I('s_lshl_b32 %s, %s, 1' % (sA, sBE))
    I('s_add_u32 %s, %s, %s' % (sDuty, sTG, sA))
    I('s_and_b32 %s, %s, 3' % (sDuty, sDuty))
    I('s_mov_b32 %s, 0' % sRS)
    I('s_lshl_b32 %s, %s, 2' % (sA, sT))
    I('s_add_u32 %s, %s, %s' % (sA, sA, sTG))
    I('s_mul_i32 %s, %s, %d' % (sHB, sA, 144 * 1024))


def dma_offsets():
    I('s_lshl_b32 %s, %s, 7' % (sOX, sSlab))
    I('s_mul_i32 %s, %s, %s' % (sO0, sSlab, sStr0))
    I('s_add_u32 %s, %s, %s' % (sO0, sO0, sBs0))
    I('s_mul_i32 %s, %s, %s' % (sO1, sSlab, sStr1))
    I('s_add_u32 %s, %s, %s' % (sO1, sO1, sBs1))


def dma_list(four):
    def mk(area, v, r, so, first):
        def f():
            if first:
                I('s_add_u32 m0, %s, %s' % (sWSl, sMB))
                if area:
                    I('s_add_u32 m0, m0, %d' % (16384 * area))
            I('buffer_load_dwordx4 v%d, %s, %s offen %slds' % (v, srd(r), so, '' if first else 'offset:1024 '))
        return f
    L = [mk(0, vX0, rX, sOX, True), mk(0, vX1, rX, sOX, False),
         mk(1, vA00, rA0, sO0, True), mk(1, vA01, rA0, sO0, False)]
    if four:
        L += [mk(2, vA10, rA1, sO1, True), mk(2, vA11, rA1, sO1, False)]
    return L


def dma_advance(four):
    I('s_add_u32 %s, %s, 1' % (sDn, sDn))
    I('s_add_u32 %s, %s, 1' % (sSlab, sSlab))
    I('s_cmp_eq_u32 %s, 7' % sSlab)
    I('s_cselect_b32 %s, 0, %s' % (sSlab, sSlab))
    I('s_add_u32 %s, %s, %d' % (sWSl, sWSl, SLOT))
    I('s_cmp_eq_u32 %s, %d' % (sWSl, 3 * SLOT))
    I('s_cselect_b32 %s, 0, %s' % (sWSl, sWSl))
    if four:
        I('s_cmp_eq_u32 %s, 7' % sDn)
        with a.skip_if('s_cbranch_scc0'):
            I('s_mov_b32 s%d, 0' % (rA1 + 2))
            I('s_add_u32 %s, %s, 256' % (sBs0, sBs0))
            I('s_cmp_ge_u32 %s, 2' % sTY)
            I('s_cselect_b32 s%d, 0, s%d' % (rX + 2, rX + 2))
            I('s_cselect_b32 s%d, 0, s%d' % (rA0 + 2, rA0 + 2))
    else:
        I('s_cmp_eq_u32 %s, 14' % sDn)
        I('s_cselect_b32 s%d, 0, s%d' % (rX + 2, rX + 2))
        I('s_cselect_b32 s%d, 0, s%d' % (rA0 + 2, rA0 + 2))
    dma_offsets()


def reads(ks, b, nt):
    f = FB[b]
    g = [['ds_read_b128 %s, v%d' % (vr(f, 4), vRX + ks)]]
    for t in range(nt):
        g.append(['ds_read_b64_tr_b16 %s, v%d offset:%d' % (vr(f + 4 + 4 * t + 2 * s, 2), vRT + t, 4096 * ks + 1024 * s)
                  for s in range(2)])
    return g


def duties(ks, b, nt, stats):
    f = FB[b]
    if stats:
        I('s_cmp_lg_u32 %s, %d' % (sBE, ks >> 1))
        with a.skip_if('s_cbranch_scc1'):
            for i in range(0, 4, 2):
                I('v_lshlrev_b32 v%d, 16, v%d' % (vT0, f + i))
                I('v_and_b32 v%d, 0xffff0000, v%d' % (vT1, f + i))
                I('v_lshlrev_b32 v%d, 16, v%d' % (vT2, f + i + 1))
                I('v_and_b32 v%d, 0xffff0000, v%d' % (vT3, f + i + 1))
                for t in (vT0, vT1, vT2, vT3):
                    I('v_add_f32 v%d, v%d, v%d' % (vS1, vS1, t))
                    I('v_fmac_f32 v%d, v%d, v%d' % (vS2, t, t))
    I('s_cmp_lg_u32 %s, %d' % (sDuty, ks))
    with a.skip_if('s_cbranch_scc1'):
        for i in range(4):
            for t in range(nt):
                I('v_lshlrev_b32 v%d, 16, v%d' % (vT0 + t, f + 4 + 4 * t + i))
            for t in range(nt):
                I('v_add_f32 v%d, v%d, v%d' % (vCS + t, vCS + t, vT0 + t))
            for t in range(nt):
                I('v_and_b32 v%d, 0xffff0000, v%d' % (vT0 + t, f + 4 + 4 * t + i))
            for t in range(nt):
                I('v_add_f32 v%d, v%d, v%d' % (vCS + t, vCS + t, vT0 + t))


def block(ks, b, nt, stats, rd, extra):
    f = FB[b]
    rd = rd or []
    if nt == 4:
        plan = [rd[0:2], rd[2:4], rd[4:5], []]
    else:
        plan = [rd[0:2], rd[2:3]]
    extra = list(extra)
    for t in range(nt):
        I('v_mfma_f32_32x32x16_bf16 %s, %s, %s, %s' % (vr(acc(t), 16), vr(f + 4 + 4 * t, 4), vr(f, 4), vr(acc(t), 16)))
        for g in plan[t] if rd else []:
            for r in g:
                I(r)
        if extra:
            e = extra.pop(0)
            if e:
                e()
    for e in extra:
        if e:
            e()
    duties(ks, b, nt, stats)


def pass_loop(nt):
    four = nt == 4
    lab = a.newlabel('LOOP')
    I('s_mov_b32 %s, 0' % sSt)
    a.flush_hazards(4)
    a.label(lab)
    h0 = len(a.hist)
    a.forget()
    stamp()
    a.wait(vm=6 if four else 4, lg=0)
    I('s_barrier')
    stamp()
    d = dma_list(four)

    def hook():
        I('s_cmp_lg_u32 %s, %s' % (sSt, sHook))
        with a.skip_if('s_cbranch_scc1'):
            I('s_mov_b64 exec, 1')
            I('buffer_store_dword v%d, v%d, %s, 0 offen sc1' % (vFLv, vFLo, srd(rFL)))
            I('s_mov_b64 exec, -1')
        if four:
            I('s_cmp_lg_u32 %s, 3' % sSt)
            with a.skip_if('s_cbranch_scc1'):
                a.auto = False
                I('buffer_load_dword v%d, v%d, %s, 0 offen' % (vPF, vPO, srd(rT)))
                a.auto = True

    def adv():
        dma_advance(four)

    def addr():
        I('s_add_u32 %s, %s, %d' % (sRS, sRS, SLOT))
        I('s_cmp_eq_u32 %s, %d' % (sRS, 3 * SLOT))
        csel2(sDl, -2 * SLOT, SLOT)
        I('s_cselect_b32 %s, 0, %s' % (sRS, sRS))
        for r in list(range(vRX, vRX + 4)) + list(range(vRT, vRT + nt)):
            I('v_add_u32 v%d, %s, v%d' % (r, sDl, r))
    if four:
        ex = [[d[0], d[1], None, None], [d[2], d[3], None, None], [d[4], d[5], adv, hook], [None, None, None, addr]]
    else:
        ex = [[d[0], d[1]], [d[2], d[3]], [adv, hook], [None, addr]]
    block(3, 1, nt, four, reads(0, 0, nt), ex[0])
    block(0, 0, nt, four, reads(1, 1, nt), ex[1])
    block(1, 1, nt, four, reads(2, 0, nt), ex[2])
    block(2, 0, nt, four, reads(3, 1, nt), ex[3])
    I('s_add_u32 %s, %s, 1' % (sSt, sSt))
    I('s_cmp_lt_u32 %s, 7' % sSt)
    I('s_cbranch_scc1 %s' % lab)
    assert a.check_backedge(h0) <= 0, a.check_backedge(h0)
    a.vm = []
    block(3, 1, nt, four, None, [])


def reduce_stats(nt, ps):
    I('v_and_b32 v%d, 31, v%d' % (vT0, vL))
    if ps == 0:
        I('s_lshl_b32 %s, %s, 8' % (sA, sTG))
        I('s_add_u32 %s, %s, %d' % (sA, sA, MISC))
        I('v_lshl_add_u32 v%d, v%d, 3, %s' % (vT1, vT0, sA))
        I('ds_add_f32 v%d, v%d offset:%d' % (vT1, vS1, ST_OFF))
        I('ds_add_f32 v%d, v%d offset:%d' % (vT1, vS2, ST_OFF + 4))
    I('s_lshl_b32 %s, %s, 9' % (sA, sBE))
    I('s_add_u32 %s, %s, %d' % (sA, sA, MISC))
    I('v_lshl_add_u32 v%d, v%d, 2, %s' % (vT2, vT0, sA))
    for t in range(nt):
        I('ds_add_f32 v%d, v%d offset:%d' % (vT2, vCS + t, CS_OFF + 1024 * ps + 128 * t))
    a.wait(lg=0)
    I('s_barrier')
    I('v_lshrrev_b32 v%d, 5, v%d' % (vT2, vL))
    I('v_lshl_add_u32 v%d, v%d, 4, %s' % (vT2, vT2, sA))
    if ps == 0:
        I('ds_read_b64 %s, v%d offset:%d' % (vr(vS1, 2), vT1, ST_OFF))
        I('v_mul_f32 v%d, %s, v%d' % (vNMU, f32(-1.0 / 448), vS1))
        I('v_mul_f32 v%d, %s, v%d' % (vS2, f32(1.0 / 448), vS2))
        I('v_fma_f32 v%d, -v%d, v%d, v%d' % (vS2, vNMU, vNMU, vS2))
        I('v_max_f32 v%d, 0, v%d' % (vS2, vS2))
        I('v_add_f32 v%d, %s, v%d' % (vS2, f32(1e-5), vS2))
        I('v_rsq_f32 v%d, v%d' % (vR, vS2))
        I('v_rcp_f32 v%d, v%d' % (vR2, vS2))
        I('v_mul_f32 v%d, 0x3fb8aa3b, v%d' % (vC, vR))


def read_cs(t, ps, dst):
    for j in range(4):
        I('ds_read_b128 %s, v%d offset:%d' % (vr(dst + 4 * j, 4), vT2, CS_OFF + 1024 * ps + 128 * t + 32 * j))


def center(t, cs):
    for i in range(0, 16, 2):
        I('v_pk_fma_f32 %s, %s, %s, %s op_sel_hi:[1,0,1]' % (vr(acc(t) + i, 2), vr(cs + i, 2), vr(vNMU, 2), vr(acc(t) + i, 2)))


def ffn_epi(tiles, ps, kbase_imm):
    for n, t in enumerate(tiles):
        read_cs(t, ps, vE + 16 * n)
    I('s_lshl_b32 %s, %s, 1' % (sA, sBE))
    I('s_add_u32 %s, %s, %s' % (sA, sA, sK0))
    I('s_lshl_b32 %s, %s, 10' % (sA, sA))
    I('s_add_u32 %s, %s, %s' % (sA, sA, sHB))
    for n, t in enumerate(tiles):
        A = acc(t)
        center(t, vE + 16 * n)
        for i in range(8):
            I('v_max_f32 v%d, 0, v%d' % (A + i, A + i))
        for i in range(0, 8, 2):
            I('v_pk_mul_f32 %s, %s, %s op_sel_hi:[1,0]' % (vr(A + 8 + i, 2), vr(A + 8 + i, 2), vr(vR2, 2)))
        for i in range(0, 8, 2):
            I('v_pk_mul_f32 %s, %s, %s' % (vr(A + i, 2), vr(A + i, 2), vr(A + 8 + i, 2)))
        o = vE + 64 + 4 * n
        for i in range(4):
            I('v_cvt_pk_bf16_f32 v%d, v%d, v%d' % (o + i, A + 2 * i, A + 2 * i + 1))
        k = kbase_imm + 4 * (t >> 1) + (t & 1)
        I('s_add_u32 %s, %s, %d' % (sB, sA, 1024 * k))
        I('buffer_store_dwordx4 %s, v%d, %s, %s offen sc1' % (vr(o, 4), vHo, srd(rWS), sB))


def dbg_issue():
    mk_srd(rFL, pDBG, 256)
    I('v_lshlrev_b32 v%d, 2, v%d' % (vFLo, vL))
    I('buffer_load_dword v%d, v%d, %s, 0 offen sc1' % (vDB, vFLo, srd(rFL)))


def dbg_check():
    lp, done = a.newlabel('DBL'), a.newlabel('DBD')
    I('s_mov_b32 %s, %d' % (sCnt, SPIN))
    I('v_cmp_ne_u32 vcc, 0, v%d' % vDB)
    I('s_cmp_eq_u64 vcc, -1')
    I('s_cbranch_scc1 %s' % done)
    a.label(lp)
    a.auto = False
    I('s_sleep 2')
    I('buffer_load_dword v%d, v%d, %s, 0 offen sc1' % (vDB, vFLo, srd(rFL)))
    a.raw('    s_waitcnt vmcnt(0)')
    I('v_cmp_ne_u32 vcc, 0, v%d' % vDB)
    I('s_sub_u32 %s, %s, 1' % (sCnt, sCnt))
    I('s_cbranch_scc1 %s' % done)
    I('s_cmp_eq_u64 vcc, -1')
    I('s_cbranch_scc0 %s' % lp)
    a.vm.pop()
    a.auto = True
    a.label(done)


def flag_setup(p_expr_code):
    mk_srd(rFL, pWS, WS_SIZE)
    p_expr_code()
    I('s_mul_i32 %s, %s, 12' % (sB, sT))
    I('s_add_u32 %s, %s, %s' % (sA, sA, sB))
    I('s_lshl_b32 %s, %s, 7' % (sA, sA))
    I('s_lshl_b32 %s, %s, 2' % (sB, sW))
    I('s_add_u32 %s, %s, %s' % (sA, sA, sB))
    I('s_add_u32 %s, %s, 0x%x' % (sA, sA, WS_FL))
    I('v_mov_b32 v%d, %s' % (vFLo, sA))


def flag_store(val):
    I('v_mov_b32 v%d, %d' % (vFLv, val))
    I('s_mov_b64 exec, 1')
    I('buffer_store_dword v%d, v%d, %s, 0 offen sc1' % (vFLv, vFLo, srd(rFL)))
    I('s_mov_b64 exec, -1')


def load_wphi(dst):
    t = vT0
    I('v_lshrrev_b32 v%d, 5, v%d' % (t, vL))
    I('v_bfe_u32 v%d, v%d, 2, 2' % (vT1, vL))
    I('v_lshl_add_u32 v%d, v%d, 2, v%d' % (t, t, vT1))
    I('v_mul_u32_u24 v%d, 56, v%d' % (t, t))
    I('v_and_b32 v%d, 3, v%d' % (vT1, vL))
    I('v_lshl_add_u32 v%d, v%d, 3, v%d' % (t, vT1, t))
    I('v_bfe_u32 v%d, v%d, 4, 1' % (vT1, vL))
    I('v_lshl_add_u32 v%d, v%d, 5, v%d' % (t, vT1, t))
    I('s_mul_i32 %s, %s, %d' % (sA, sBE, 2 * 1568))
    I('s_add_u32 %s, %s, %d' % (sA, sA, MISC))
    I('v_add_u32 v%d, %s, v%d' % (t, sA, t))
    for h in range(2):
        for q in range(4):
            I('ds_read_b64_tr_b16 %s, v%d offset:%d' % (vr(dst + 8 * h + 2 * q, 2), t, WP_OFF + 1568 * h + 448 * q))
    I('s_mov_b32 exec_lo, 0')
    for h in range(2):
        I('v_mov_b32 v%d, 0' % (dst + 8 * h + 6))
        I('v_mov_b32 v%d, 0' % (dst + 8 * h + 7))
    I('s_mov_b32 exec_lo, -1')


def feature(t, wf, P, En, sc):
    A = acc(t)
    for i in range(8):
        I('v_cvt_pk_bf16_f32 v%d, v%d, v%d' % (En + i, A + 2 * i, A + 2 * i + 1))
    I('v_mfma_f32_32x32x16_bf16 %s, %s, %s, 0' % (vr(P, 16), vr(wf, 4), vr(En, 4)))
    I('v_mfma_f32_32x32x16_bf16 %s, %s, %s, %s' % (vr(P, 16), vr(wf + 4, 4), vr(En + 4, 4), vr(P, 16)))
    M, m, M2, m2 = sc, sc + 1, sc + 2, sc + 3
    I('v_max3_f32 v%d, v%d, v%d, v%d' % (M, P, P + 1, P + 2))
    I('v_min3_f32 v%d, v%d, v%d, v%d' % (m, P, P + 1, P + 2))
    for i in range(3, 11, 2):
        I('v_max3_f32 v%d, v%d, v%d, v%d' % (M, M, P + i, P + i + 1))
        I('v_min3_f32 v%d, v%d, v%d, v%d' % (m, m, P + i, P + i + 1))
    I('v_max_f32 v%d, v%d, v%d' % (M, M, P + 11))
    I('v_min_f32 v%d, v%d, v%d' % (m, m, P + 11))
    I('s_mov_b32 exec_hi, 0')
    for i in (12, 14):
        I('v_max3_f32 v%d, v%d, v%d, v%d' % (M, M, P + i, P + i + 1))
        I('v_min3_f32 v%d, v%d, v%d, v%d' % (m, m, P + i, P + i + 1))
    I('s_mov_b32 exec_hi, -1')
    I('v_mov_b32 v%d, v%d' % (M2, M))
    I('v_mov_b32 v%d, v%d' % (m2, m))
    I('v_permlane32_swap_b32 v%d, v%d' % (M, M2))
    I('v_permlane32_swap_b32 v%d, v%d' % (m, m2))
    I('v_max_f32 v%d, v%d, v%d' % (M, M, M2))
    I('v_min_f32 v%d, v%d, v%d' % (m, m, m2))
    I('v_mul_f32 v%d, v%d, v%d' % (M, M, vC))
    I('v_mul_f32 v%d, v%d, v%d' % (M2, m, vC))
    for i in range(0, 16, 2):
        I('v_pk_fma_f32 %s, %s, %s, %s op_sel:[0,1,0] op_sel_hi:[1,1,0] neg_lo:[1,0,0] neg_hi:[1,0,0]'
          % (vr(En + i, 2), vr(P + i, 2), vr(vR2, 2), vr(M2, 2)))
        I('v_pk_fma_f32 %s, %s, %s, %s op_sel:[0,1,0] op_sel_hi:[1,1,0] neg_lo:[0,0,1] neg_hi:[0,0,1]'
          % (vr(P + i, 2), vr(P + i, 2), vr(vR2, 2), vr(M, 2)))
    for i in range(16):
        I('v_exp_f32 v%d, v%d' % (P + i, P + i))
        I('v_exp_f32 v%d, v%d' % (En + i, En + i))
    I('s_mov_b32 exec_lo, 0')
    for i in range(12, 16):
        I('v_mov_b32 v%d, 0' % (P + i))
        I('v_mov_b32 v%d, 0' % (En + i))
    I('s_mov_b32 exec_lo, -1')
    I('v_pk_add_f32 %s, %s, %s' % (vr(sc, 2), vr(P, 2), vr(P + 2, 2)))
    I('v_pk_add_f32 %s, %s, %s' % (vr(sc + 2, 2), vr(En, 2), vr(En + 2, 2)))
    for i in range(4, 16, 2):
        I('v_pk_add_f32 %s, %s, %s' % (vr(sc, 2), vr(sc, 2), vr(P + i, 2)))
        I('v_pk_add_f32 %s, %s, %s' % (vr(sc + 2, 2), vr(sc + 2, 2), vr(En + i, 2)))
    I('v_add_f32 v%d, v%d, v%d' % (sc, sc, sc + 1))
    I('v_add_f32 v%d, v%d, v%d' % (sc + 2, sc + 2, sc + 3))
    I('v_mov_b32 v%d, v%d' % (sc + 1, sc))
    I('v_mov_b32 v%d, v%d' % (sc + 3, sc + 2))
    I('v_permlane32_swap_b32 v%d, v%d' % (sc, sc + 1))
    I('v_permlane32_swap_b32 v%d, v%d' % (sc + 2, sc + 3))
    I('v_add_f32 v%d, v%d, v%d' % (sc, sc, sc + 1))
    I('v_add_f32 v%d, v%d, v%d' % (sc + 2, sc + 2, sc + 3))
    I('v_rcp_f32 v%d, v%d' % (sc, sc))
    I('v_rcp_f32 v%d, v%d' % (sc + 2, sc + 2))
    for i in range(0, 16, 2):
        I('v_pk_mul_f32 %s, %s, %s op_sel_hi:[1,0]' % (vr(P + i, 2), vr(P + i, 2), vr(sc, 2)))
        I('v_pk_mul_f32 %s, %s, %s op_sel_hi:[1,0]' % (vr(En + i, 2), vr(En + i, 2), vr(sc + 2, 2)))


def pack8(dst, src):
    for i in range(8):
        I('v_cvt_pk_bf16_f32 v%d, v%d, v%d' % (dst + i, src + 2 * i, src + 2 * i + 1))


def epi_A0():
    WF, P, En, sc, CSB, PK = vE, vE + 16, vE + 32, vE + 48, vE + 52, FB[0]
    AD = 8
    load_wphi(WF)
    I('v_and_b32 v%d, 31, v%d' % (vT0, vL))
    I('s_lshl_b32 %s, %s, 5' % (sA, sTG))
    I('v_add_u32 v%d, %s, v%d' % (vT0, sA, vT0))
    I('v_mul_u32_u24 v%d, 192, v%d' % (vT0, vT0))
    I('v_bfe_u32 v%d, v%d, 1, 3' % (vT1, vL))
    I('v_lshrrev_b32 v%d, 5, v%d' % (vT3, vL))
    I('v_xor_b32 v%d, v%d, v%d' % (vT1, vT1, vT3))
    I('v_lshl_add_u32 v%d, v%d, 3, v%d' % (vT0, vT1, vT0))
    I('s_mul_i32 %s, %s, 49152' % (sA, sBE))
    I('v_add_u32 v%d, %s, v%d' % (AD, sA, vT0))
    for j in range(1, 4):
        I('v_xor_b32 v%d, %d, v%d' % (AD + j, 16 * j, AD))
    for h in range(2):
        read_cs(h, 0, CSB)
        read_cs(2 + h, 0, CSB + 16)
        center(h, CSB)
        A = acc(h)
        for i in range(0, 16, 2):
            I('v_pk_mul_f32 %s, %s, %s op_sel:[0,1] op_sel_hi:[1,1]' % (vr(A + i, 2), vr(A + i, 2), vr(vNMU, 2)))
        pack8(PK, A)
        I('s_mov_b32 exec_lo, 0')
        I('v_mov_b32 v%d, 0x3f80' % (PK + 6))
        I('v_mov_b32 v%d, 0' % (PK + 7))
        I('s_mov_b32 exec_lo, -1')
        for j in range(4):
            I('ds_write_b64 v%d, %s offset:%d' % (AD + j, vr(PK + 2 * j, 2), 24576 * h + 128))
        center(2 + h, CSB + 16)
        feature(2 + h, WF + 8 * h, P, En, sc)
        pack8(PK + 8, P)
        pack8(PK + 16, En)
        for j in range(4):
            I('ds_write_b64 v%d, %s offset:%d' % (AD + j, vr(PK + 8 + 2 * j, 2), 24576 * h))
            I('ds_write_b64 v%d, %s offset:%d' % (AD + j, vr(PK + 16 + 2 * j, 2), 24576 * h + 64))
    I('v_lshrrev_b32 v%d, 5, v%d' % (vT0, vL))
    I('v_bfe_u32 v%d, v%d, 2, 2' % (vT1, vL))
    I('v_lshl_add_u32 v%d, v%d, 3, v%d' % (vT3, vT0, vT1))
    I('v_mul_u32_u24 v%d, 192, v%d' % (vT3, vT3))
    I('v_lshrrev_b32 v%d, 1, v%d' % (vT1, vT1))
    I('v_lshl_add_u32 v%d, v%d, 2, v%d' % (vT0, vT0, vT1))
    I('v_bfe_u32 v%d, v%d, 4, 1' % (vT1, vL))
    I('v_and_b32 v%d, 3, v%d' % (AD, vL))
    I('v_lshl_add_u32 v%d, v%d, 2, v%d' % (vT1, vT1, AD))
    I('v_xor_b32 v%d, v%d, v%d' % (vT0, vT0, vT1))
    I('v_lshl_add_u32 v%d, v%d, 3, v%d' % (vT3, vT0, vT3))
    I('s_lshr_b32 %s, %s, 1' % (sA, sW))
    I('s_mul_i32 %s, %s, 24576' % (sA, sA))
    I('v_add_u32 v%d, %s, v%d' % (AD, sA, vT3))
    I('v_xor_b32 v%d, 16, v%d' % (AD + 1, AD))
    I('v_add_u32 v%d, %d, v%d' % (AD + 1, 4 * 192, AD + 1))
    I('s_and_b32 %s, %s, 1' % (sA, sW))
    I('s_lshl_b32 %s, %s, 6' % (sA, sA))
    I('v_add_u32 v%d, %s, v%d' % (AD + 2, sA, AD))
    I('v_add_u32 v%d, %s, v%d' % (AD + 3, sA, AD + 1))
    a.wait(lg=0)
    I('s_barrier')
    FR = vE
    for i in range(8):
        f = FR + 8 * i
        for s in range(2):
            I('ds_read_b64_tr_b16 %s, v%d offset:%d' % (vr(f + 2 * s, 2), AD + 2 + s, 3072 * i))
        for s in range(2):
            I('ds_read_b64_tr_b16 %s, v%d offset:%d' % (vr(f + 4 + 2 * s, 2), AD + s, 3072 * i + 128))
        if i >= 2:
            k = i - 2
            I('v_mfma_f32_32x32x16_bf16 %s, %s, %s, %s' % (vr(ACC, 16), vr(FR + 8 * k, 4), vr(FR + 8 * k + 4, 4),
                                                         vr(ACC, 16) if k else '0'))
    for k in (6, 7):
        I('v_mfma_f32_32x32x16_bf16 %s, %s, %s, %s' % (vr(ACC, 16), vr(FR + 8 * k, 4), vr(FR + 8 * k + 4, 4), vr(ACC, 16)))
    dbg_check()
    I('s_lshl_b32 %s, %s, 3' % (sA, sG))
    I('s_add_u32 %s, %s, %s' % (sA, sA, sW))
    I('s_lshl_b32 %s, %s, 12' % (sA, sA))
    I('s_add_u32 %s, %s, 0x%x' % (sA, sA, WS_KV))
    I('v_lshlrev_b32 v%d, 2, v%d' % (vT0, vL))
    for r in range(16):
        I('buffer_atomic_add_f32 v%d, v%d, %s, %s offen offset:%d sc1' % (ACC + r, vT0, srd(rWS), sA, 256 * r))
    mk_srd(rFL, pWS, WS_SIZE)
    I('s_lshl_b32 %s, %s, 4' % (sA, sG))
    I('s_add_u32 %s, %s, %s' % (sA, sA, sT))
    I('s_lshl_b32 %s, %s, 7' % (sA, sA))
    I('s_lshl_b32 %s, %s, 2' % (sB, sW))
    I('s_add_u32 %s, %s, %s' % (sA, sA, sB))
    I('s_add_u32 %s, %s, 0x%x' % (sA, sA, WS_KF))
    I('v_mov_b32 v%d, %s' % (vFLo, sA))
    a.wait(vm=0)
    flag_store(1)


PQ = 176
KVL = 131072


def epi_A1():
    WF, P, En, sc, CSB = vE, vE + 64, vE + 80, vE + 96, vE + 16
    ffn_epi([0, 1], 0, 0)
    load_wphi(WF)
    dbg_check()

    def p():
        I('s_add_u32 %s, %s, 8' % (sA, sG))
    flag_setup(p)
    for h in range(2):
        read_cs(2 + h, 0, CSB)
        center(2 + h, CSB)
        feature(2 + h, WF + 8 * h, P, En, sc)
        if h == 0:
            a.wait(vm=0)
            flag_store(1)
        pack8(PQ + 16 * h, P)
        pack8(PQ + 16 * h + 8, En)


def kv_poll():
    lp, done = a.newlabel('KVL'), a.newlabel('KVD')
    I('v_lshrrev_b32 v%d, 2, v%d' % (vT0, vL))
    I('v_lshlrev_b32 v%d, 7, v%d' % (vT0, vT0))
    I('v_and_b32 v%d, 3, v%d' % (vT1, vL))
    I('v_lshl_add_u32 v%d, v%d, 3, v%d' % (vT0, vT1, vT0))
    I('s_lshl_b32 %s, %s, 11' % (sA, sG))
    I('s_add_u32 %s, %s, 0x%x' % (sA, sA, WS_KF))
    I('s_mov_b32 %s, %d' % (sCnt, SPIN))
    a.wait(vm=0)
    a.label(lp)
    a.auto = False
    I('buffer_load_dwordx2 %s, v%d, %s, %s offen sc1' % (vr(vT2, 2), vT0, srd(rWS), sA))
    a.raw('    s_waitcnt vmcnt(0)')
    I('v_and_b32 v%d, v%d, v%d' % (vT2, vT2, vT3))
    I('v_cmp_ne_u32 vcc, 0, v%d' % vT2)
    I('s_sub_u32 %s, %s, 1' % (sCnt, sCnt))
    I('s_cbranch_scc1 %s' % done)
    I('s_cmp_eq_u64 vcc, -1')
    I('s_cbranch_scc1 %s' % done)
    I('s_sleep 2')
    I('s_branch %s' % lp)
    a.vm.pop()
    a.auto = True
    a.label(done)


def kv_fetch():
    I('s_lshl_b32 %s, %s, 12' % (sA, sW))
    I('s_add_u32 m0, %s, %d' % (sA, KVL))
    I('s_lshl_b32 %s, %s, 15' % (sB, sG))
    I('s_add_u32 %s, %s, %s' % (sA, sA, sB))
    I('s_add_u32 %s, %s, 0x%x' % (sA, sA, WS_KV))
    for q in range(4):
        I('buffer_load_dwordx4 v%d, %s, %s offen offset:%d sc1 lds' % (vHo, srd(rWS), sA, 1024 * q))


def o_compute(O, KR, KF):
    I('s_lshl_b32 %s, %s, 14' % (sA, sBE))
    I('s_add_u32 %s, %s, %d' % (sA, sA, KVL))
    I('v_lshl_add_u32 v%d, v%d, 2, %s' % (vT0, vL, sA))
    I('s_lshl_b32 %s, %s, 3' % (sA, sG))
    I('s_lshl_b32 %s, %s, 2' % (sB, sBE))
    I('s_add_u32 %s, %s, %s' % (sA, sA, sB))
    I('s_add_u32 %s, %s, 112' % (sA, sA))
    I('s_lshl_b32 %s, %s, 10' % (sA, sA))
    I('s_add_u32 %s, %s, %s' % (sA, sA, sHB))
    for h in range(2):
        for r in range(0, 32, 2):
            I('ds_read2st64_b32 %s, v%d offset0:%d offset1:%d' % (vr(KR + r, 2), vT0, 32 * h + r, 32 * h + r + 1))
            if r % 8 == 6 and r > 8:
                q = r // 2 - 7
                for i in range(q, q + 4):
                    I('v_cvt_pk_bf16_f32 v%d, v%d, v%d' % (KF + i, KR + 2 * i, KR + 2 * i + 1))
        for i in range(12, 16):
            I('v_cvt_pk_bf16_f32 v%d, v%d, v%d' % (KF + i, KR + 2 * i, KR + 2 * i + 1))
        for q in range(4):
            I('v_mfma_f32_32x32x16_bf16 %s, %s, %s, %s' % (vr(O, 16), vr(KF + 4 * q, 4), vr(PQ + 16 * h + 4 * q, 4),
                                                         vr(O, 16) if q else '0'))
        I('v_mov_b32 v%d, v%d' % (vT2, O + 12))
        I('v_mov_b32 v%d, v%d' % (vT3, O + 12))
        I('v_permlane32_swap_b32 v%d, v%d' % (vT3, vT2))
        I('v_add_f32 v%d, %s, v%d' % (vT2, f32(1e-6), vT2))
        I('v_rcp_f32 v%d, v%d' % (vT2, vT2))
        for i in range(0, 16, 2):
            I('v_pk_mul_f32 %s, %s, %s op_sel_hi:[1,0]' % (vr(O + i, 2), vr(O + i, 2), vr(vT2, 2)))
        pack8(KR, O)
        I('s_mov_b32 exec_lo, 0')
        I('v_mov_b32 v%d, 0' % (KR + 6))
        I('v_mov_b32 v%d, 0' % (KR + 7))
        I('s_mov_b32 exec_lo, -1')
        for q in range(2):
            I('buffer_store_dwordx4 %s, v%d, %s, %s offen offset:%d sc1' % (vr(KR + 4 * q, 4), vHo, srd(rWS), sA, 2048 * h + 1024 * q))
        if h == 0:
            KR += 8


def phase1():
    prologue()
    pass_loop(4)
    I('s_cmp_lt_u32 %s, 2' % sTY)
    with a.skip_if('s_cbranch_scc1'):
        a.raw('    s_waitcnt vmcnt(0)')
    dbg_issue()
    reduce_stats(4, 0)
    stamp(1)
    I('s_cmp_eq_u32 %s, 2' % sTY)
    I('s_cbranch_scc1 L_A0')
    I('s_cmp_eq_u32 %s, 3' % sTY)
    I('s_cbranch_scc1 L_A1')
    st = (list(a.vm), list(a.lg))
    ffn_epi([0, 1, 2, 3], 0, 0)
    dbg_check()

    def p():
        I('s_lshl_b32 %s, %s, 1' % (sA, sG))
        I('s_add_u32 %s, %s, %s' % (sA, sA, sTY))
    flag_setup(p)
    I('v_mov_b32 v%d, 1' % vFLv)
    I('s_mov_b32 %s, 1' % sHook)
    for r in list(range(vCS, vCS + 2)) + list(range(FB[1], FB[1] + 12)) + list(range(ACC, ACC + 32)):
        I('v_mov_b32 v%d, 0' % r)
    stamp(2)
    pass_loop(2)
    reduce_stats(2, 1)
    ffn_epi([0, 1], 1, 8)
    a.wait(vm=0)
    flag_store(2)
    stamp(3)
    I('s_branch L_P2')
    a.label('L_A0')
    a.vm, a.lg = list(st[0]), list(st[1])
    a.flush_hazards(4)
    epi_A0()
    stamp(3)
    I('s_branch L_P2')
    a.label('L_A1')
    a.vm, a.lg = list(st[0]), list(st[1])
    a.flush_hazards(4)
    epi_A1()
    stamp(2)
    kv_poll()
    a.wait(lg=0)
    I('s_barrier')
    kv_fetch()
    a.wait(vm=0)
    I('s_barrier')
    o_compute(ACC, FB[0], ACC + 16)
    a.wait(vm=0)
    flag_store(2)
    stamp(3)
    a.label('L_P2')
    a.forget()


def phase2(fused):
    vH1, vW0, vW1, vW1m, vPo, vPv = 2, 3, 4, 5, 6, 7
    vRH, vRW = 8, 9
    vXR = 12
    vOo = 10
    F2 = 40
    A2 = ACC
    sNT, sT64, sHF = sK1, sK2, sK3
    sKF, sKA, sKO, sH2 = sSt, sDn, sSlab, sStr0
    if not fused:
        I('s_cmp_ge_u32 s2, 224')
        I('s_cbranch_scc1 L_END2')
        I('s_load_dwordx16 s[16:31], s[0:1], 0')
        I('s_load_dwordx4 s[32:35], s[0:1], 64')
        I('s_load_dwordx2 s[36:37], s[0:1], 80')
        I('v_lshrrev_b32 v2, 6, v0')
        I('v_and_b32 v%d, 63, v0' % vL)
        I('v_readfirstlane_b32 %s, v2' % sW)
        I('s_and_b32 %s, s2, 7' % sXCD)
        I('s_lshr_b32 %s, s2, 3' % sIDX)
        I('v_lshlrev_b32 v%d, 4, v%d' % (vHo, vL))
        a.raw('    s_waitcnt lgkmcnt(0)')
        mk_srd(rWS, pWS, WS_SIZE)
    else:
        stamp_flush()
        I('s_cmp_ge_u32 %s, 28' % sIDX)
        I('s_cbranch_scc1 L_END')
    mk_srd(rX, pX, 2048 * 896)
    mk_srd(rWD, pWD, 1792 * 896)
    mk_srd(rWO, pWO, 448 * 896)
    mk_srd(rT, pOUT, 2048 * 896)
    I('s_mul_i32 %s, %s, 37' % (sA, sIDX))
    I('s_lshr_b32 %s, %s, 8' % (sA, sA))
    I('s_mul_i32 %s, %s, 7' % (sB, sA))
    I('s_sub_u32 %s, %s, %s' % (sNT, sIDX, sB))
    I('s_lshl_b32 %s, %s, 2' % (sT64, sXCD))
    I('s_add_u32 %s, %s, %s' % (sT64, sT64, sA))
    I('s_and_b32 %s, %s, 1' % (sHF, sT64))
    I('s_mul_i32 %s, %s, %d' % (sH2, sT64, 2 * 144 * 1024))
    I('s_lshr_b32 %s, %s, 1' % (sA, sW))
    I('s_and_b32 %s, %s, 1' % (sB, sW))
    I('s_mul_i32 %s, %s, 28' % (sC, sA))
    I('s_mul_i32 %s, %s, 12' % (sD_, sB))
    I('s_add_u32 %s, %s, %s' % (sKF, sC, sD_))
    I('s_lshl_b32 %s, %s, 1' % (sD_, sB))
    I('s_add_u32 %s, %s, %s' % (sKA, sC, sD_))
    I('s_add_u32 %s, %s, 24' % (sKA, sKA))
    I('s_lshl_b32 %s, %s, 1' % (sKO, sW))
    I('s_lshr_b32 %s, %s, 1' % (sC, sT64))
    I('s_mul_i32 %s, %s, 12*128' % (sC, sC))
    I('s_lshl_b32 %s, %s, 3' % (sD_, sHF))
    I('s_add_u32 %s, %s, %s' % (sC, sC, sD_))
    I('s_add_u32 %s, %s, 0x%x' % (sC, sC, WS_FL))
    I('s_lshl_b32 %s, %s, 7' % (sD_, sW))
    I('s_add_u32 %s, %s, %s' % (sD_, sD_, sC))
    I('s_lshl_b32 %s, %s, 7' % (sA, sA))
    I('s_add_u32 %s, %s, %s' % (sA, sA, sC))
    I('s_lshl_b32 %s, %s, 4' % (sB, sB))
    I('s_add_u32 %s, %s, %s' % (sA, sA, sB))
    I('s_add_u32 %s, %s, 1024' % (sA, sA))
    I('v_and_b32 v20, 1, v%d' % vL)
    I('v_bfe_u32 v21, v%d, 1, 1' % vL)
    I('v_lshlrev_b32 v21, 4, v21')
    I('v_add_u32 v21, %s, v21' % sD_)
    I('v_mov_b32 v22, %s' % sA)
    I('v_cmp_gt_u32 vcc, 4, v%d' % vL)
    I('v_cndmask_b32 v21, v22, v21, vcc')
    I('v_lshl_add_u32 v%d, v20, 2, v21' % vPo)
    I('v_add_u32 v%d, %d, v%d' % (vH1, 144 * 1024 - 1024, vHo))
    I('v_lshrrev_b32 v20, 3, v%d' % vL)
    I('v_mul_u32_u24 v20, 896, v20')
    I('v_bfe_u32 v21, v%d, 4, 1' % vL)
    I('v_lshlrev_b32 v21, 2, v21')
    I('v_and_b32 v22, 7, v%d' % vL)
    I('v_xor_b32 v21, v21, v22')
    I('v_lshl_add_u32 v20, v21, 4, v20')
    I('s_lshl_b32 %s, %s, 7' % (sA, sNT))
    I('v_add_u32 v%d, %s, v20' % (vW0, sA))
    I('v_add_u32 v%d, %d, v%d' % (vW1, 8 * 896 - 1024, vW0))
    I('v_mov_b32 v20, 0x%x' % BIG)
    I('v_cmp_gt_u32 vcc, 32, v%d' % vL)
    I('v_cndmask_b32 v%d, v20, v%d, vcc' % (vW1m, vW1))
    I('s_lshl_b32 %s, %s, 11' % (sMB, sW))
    I('s_lshr_b32 %s, %s, 2' % (sA, sW))
    I('s_lshl_b32 %s, %s, 13' % (sA, sA))
    I('s_and_b32 %s, %s, 1' % (sB, sW))
    I('s_lshl_b32 %s, %s, 10' % (sC, sB))
    I('s_add_u32 %s, %s, %s' % (sC, sC, sA))
    I('v_add_u32 v%d, %s, v%d' % (vRH, sC, vHo))
    I('v_lshrrev_b32 v20, 5, v%d' % vL)
    I('v_bfe_u32 v21, v%d, 2, 2' % vL)
    I('v_lshl_add_u32 v20, v20, 2, v21')
    I('v_lshlrev_b32 v20, 7, v20')
    I('v_lshrrev_b32 v21, 1, v21')
    I('s_bfe_u32 %s, %s, 0x10001' % (sC, sW))
    I('v_xor_b32 v21, %s, v21' % sC)
    I('v_lshl_add_u32 v20, v21, 6, v20')
    I('v_bfe_u32 v21, v%d, 4, 1' % vL)
    I('v_lshl_add_u32 v20, v21, 5, v20')
    I('v_and_b32 v21, 3, v%d' % vL)
    I('v_lshl_add_u32 v20, v21, 3, v20')
    I('s_add_u32 %s, %s, 16384' % (sA, sA))
    I('v_add_u32 v%d, %s, v20' % (vRW, sA))
    I('s_lshl_b32 %s, %s, 6' % (sA, sT64))
    I('s_lshl_b32 %s, %s, 5' % (sB, sB))
    I('s_add_u32 %s, %s, %s' % (sA, sA, sB))
    I('v_and_b32 v20, 31, v%d' % vL)
    I('v_add_u32 v20, %s, v20' % sA)
    I('v_mul_u32_u24 v20, 896, v20')
    I('v_lshrrev_b32 v21, 5, v%d' % vL)
    I('v_lshl_add_u32 v20, v21, 4, v20')
    I('s_lshl_b32 %s, %s, 7' % (sA, sNT))
    I('s_lshl_b32 %s, %s, 6' % (sC, sC))
    I('s_add_u32 %s, %s, %s' % (sA, sA, sC))
    I('s_lshr_b32 %s, %s, 2' % (sB, sW))
    I('s_lshl_b32 %s, %s, 5' % (sB, sB))
    I('s_add_u32 %s, %s, %s' % (sA, sA, sB))
    I('v_add_u32 v%d, %s, v20' % (vOo, sA))
    I('buffer_load_dwordx4 %s, v%d, %s, 0 offen' % (vr(vXR, 4), vOo, srd(rX)))
    for r in range(16):
        I('v_mov_b32 v%d, 0' % (A2 + r))

    def kinfo(i):
        if i < 8:
            return ('F', i)
        if i < 10:
            return ('A', i - 8)
        if i < 14:
            return ('F', i - 2)
        return ('O', i - 14)

    need = {0: (0x0f, 1, 7), 8: (0x30, 1, 11), 10: (0x0f, 2, 7), 14: (0x30, 2, 11)}

    def poll_issue(vPv):
        I('buffer_load_dword v%d, v%d, %s, 0 offen sc1' % (vPv, vPo, srd(rWS)))

    def poll_check(mask, val, vPv):
        lp, done = a.newlabel('PL'), a.newlabel('PD')
        I('s_mov_b32 %s, %d' % (sCnt, SPIN))
        I('v_cmp_le_u32 vcc, %d, v%d' % (val, vPv))
        I('s_and_b32 %s, vcc_lo, 0x%x' % (sA, mask))
        I('s_cmp_eq_u32 %s, 0x%x' % (sA, mask))
        I('s_cbranch_scc1 %s' % done)
        a.label(lp)
        a.auto = False
        I('s_sleep 1')
        poll_issue(vPv)
        a.raw('    s_waitcnt vmcnt(0)')
        I('v_cmp_le_u32 vcc, %d, v%d' % (val, vPv))
        I('s_sub_u32 %s, %s, 1' % (sCnt, sCnt))
        I('s_cbranch_scc1 %s' % done)
        I('s_and_b32 %s, vcc_lo, 0x%x' % (sA, mask))
        I('s_cmp_eq_u32 %s, 0x%x' % (sA, mask))
        I('s_cbranch_scc0 %s' % lp)
        a.vm.pop()
        a.auto = True
        a.label(done)

    def dma(i):
        kind, j = kinfo(i)
        slot = (i % 4) * 32768
        I('s_add_u32 m0, %s, %d' % (sMB, slot + 16384))
        if kind == 'O':
            I('s_add_u32 %s, %s, %d' % (sA, sKO, j >> 1))
            I('s_mul_i32 %s, %s, %d' % (sB, sA, 28 * 896))
            if j & 1:
                I('s_add_u32 %s, %s, %d' % (sB, sB, 16 * 896))
            I('s_lshl_b32 %s, %s, 1' % (sA, sA))
            I('s_add_u32 %s, %s, %d' % (sA, sA, 112 + (j & 1)))
            r = rWO
        else:
            I('s_add_u32 %s, %s, %d' % (sA, sKF if kind == 'F' else sKA, j))
            I('s_mul_i32 %s, %s, %d' % (sB, sA, 16 * 896))
            r = rWD
        I('buffer_load_dwordx4 v%d, %s, %s offen lds' % (vW0, srd(r), sB), tag=i)
        I('buffer_load_dwordx4 v%d, %s, %s offen offset:1024 lds' % (vW1m if (kind == 'O' and j & 1) else vW1, srd(r), sB), tag=i)
        I('s_lshl_b32 %s, %s, 10' % (sE, sA))
        I('s_add_u32 %s, %s, %s' % (sE, sE, sH2))
        if fused and i in need:
            poll_check(*need[i])
        I('s_add_u32 m0, %s, %d' % (sMB, slot))
        I('buffer_load_dwordx4 v%d, %s, %s offen sc1 lds' % (vHo, srd(rWS), sE), tag=i)
        I('buffer_load_dwordx4 v%d, %s, %s offen offset:1024 sc1 lds' % (vH1, srd(rWS), sE), tag=i)

    if fused:
        poll_issue(need[0][2])
        a.wait(lg=0)
        I('s_barrier')
    for i in range(3):
        dma(i)
    for i in range(18):
        a.wait_tag(i, lg=0)
        I('s_barrier')
        stamp()
        slot = (i % 4) * 32768
        for q in range(4):
            f = F2 + 8 * q
            I('ds_read_b128 %s, v%d offset:%d' % (vr(f, 4), vRH, (slot + 2048 * q) & 0xffff))
            for s in range(2):
                I('ds_read_b64_tr_b16 %s, v%d offset:%d' % (vr(f + 4 + 2 * s, 2), vRW, (slot + 2048 * q + 1024 * s) & 0xffff))
        if i % 2 == 1:
            d = 65536 if i % 4 == 1 else -65536
            I('v_add_u32 v%d, %d, v%d' % (vRH, d, vRH))
            I('v_add_u32 v%d, %d, v%d' % (vRW, d, vRW))
        if fused and (i + 5) in need:
            poll_issue(need[i + 5][2])
        if i + 3 < 18:
            dma(i + 3)
        for q in range(4):
            f = F2 + 8 * q
            I('v_mfma_f32_32x32x16_bf16 %s, %s, %s, %s' % (vr(A2, 16), vr(f + 4, 4), vr(f, 4), vr(A2, 16)))
    stamp(4)
    I('s_barrier')
    I('s_lshl_b32 %s, %s, 11' % (sA, sW))
    I('v_add_u32 v20, %s, v%d' % (sA, vHo))
    I('s_xor_b32 %s, %s, 8192' % (sA, sA))
    I('v_add_u32 v21, %s, v%d' % (sA, vHo))
    I('s_cmp_lt_u32 %s, 4' % sW)
    lk1, lj = a.newlabel('K1'), a.newlabel('KJ')
    K = 24
    I('s_cbranch_scc0 %s' % lk1)
    I('ds_write_b128 v20, %s' % vr(A2 + 8, 4))
    I('ds_write_b128 v20, %s offset:1024' % vr(A2 + 12, 4))
    for r in range(8):
        I('v_mov_b32 v%d, v%d' % (K + r, A2 + r))
    I('s_branch %s' % lj)
    a.label(lk1)
    a.flush_hazards(12)
    I('ds_write_b128 v20, %s' % vr(A2, 4))
    I('ds_write_b128 v20, %s offset:1024' % vr(A2 + 4, 4))
    for r in range(8):
        I('v_mov_b32 v%d, v%d' % (K + r, A2 + 8 + r))
    a.label(lj)
    a.wait(lg=0)
    I('s_barrier')
    I('ds_read_b128 %s, v21' % vr(F2, 4))
    I('ds_read_b128 %s, v21 offset:1024' % vr(F2 + 4, 4))
    for r in range(8):
        I('v_add_f32 v%d, v%d, v%d' % (K + r, K + r, F2 + r))
    for i in range(4):
        I('v_permlane32_swap_b32 v%d, v%d' % (K + i, K + 4 + i))
    for i in range(4):
        I('v_lshlrev_b32 v%d, 16, v%d' % (F2 + 2 * i, vXR + i))
        I('v_and_b32 v%d, 0xffff0000, v%d' % (F2 + 2 * i + 1, vXR + i))
    for r in range(8):
        I('v_add_f32 v%d, v%d, v%d' % (K + r, K + r, F2 + r))
    for i in range(4):
        I('v_cvt_pk_bf16_f32 v%d, v%d, v%d' % (F2 + 8 + i, K + 2 * i, K + 2 * i + 1))
    I('buffer_store_dwordx4 %s, v%d, %s, 0 offen' % (vr(F2 + 8, 4), vOo, srd(rT)))
    stamp(5)
    stamp_flush()


def kdesc(label):
    return '''.amdhsa_kernel %s
  .amdhsa_next_free_vgpr 256
  .amdhsa_next_free_sgpr 102
  .amdhsa_accum_offset 256
  .amdhsa_group_segment_fixed_size 0
  .amdhsa_kernarg_size 88
  .amdhsa_user_sgpr_count 2
  .amdhsa_user_sgpr_kernarg_segment_ptr 1
  .amdhsa_system_sgpr_workgroup_id_x 1
.end_amdhsa_kernel
''' % label


def head(label):
    return '.globl %s\n.p2align 8\n.type %s,@function\n%s:\n' % (label, label, label)


def main():
    fused = OPT['fused']
    k1 = NAME + '_kernel'
    out = '; generated by gen/gen.py (hand-designed schedule; see gen/NOTES.md)\n'
    if fused:
        out += '; @launch grid=(256,1,1) block=(512,1,1) lds=163840\n'
    else:
        out += '; @launch kernel=%s grid=(256,1,1) block=(512,1,1) lds=163840\n' % k1
        out += '; @launch kernel=p2_kernel grid=(224,1,1) block=(512,1,1) lds=163840\n'
    out += '.amdgcn_target "amdgcn-amd-amdhsa--gfx950"\n.text\n'
    a.raw(head(k1))
    phase1()
    if fused:
        phase2(True)
        a.label('L_END')
        if OPT['dbgt']:
            I('s_cmp_ge_u32 s2, 256')
            I('s_cbranch_scc1 L_END9')
            a.raw('    s_waitcnt vmcnt(0)')
            I('s_memtime s[92:93]')
            I('s_memrealtime s[94:95]')
            a.raw('    s_waitcnt lgkmcnt(0)')
            mk_srd(rFL, pDBG, 256)
            I('s_sub_u32 s92, s92, s96')
            I('s_sub_u32 s93, s94, s98')
            I('s_not_b32 s98, s98')
            I('v_mov_b32 v2, s94')
            I('v_writelane_b32 v2, s98, 1')
            I('v_writelane_b32 v2, s92, 2')
            I('v_writelane_b32 v2, s93, 3')
            I('s_not_b32 s98, s98')
            I('v_writelane_b32 v2, s98, 4')
            I('s_not_b32 s94, s94')
            I('v_writelane_b32 v2, s94, 5')
            I('v_and_b32 v3, 63, v0')
            I('v_lshlrev_b32 v3, 2, v3')
            I('s_mov_b64 exec, 0x3f')
            I('buffer_atomic_umax v2, v3, %s, 0 offen sc1' % srd(rFL))
            a.label('L_END9')
        I('s_endpgm')
    else:
        a.label('L_END')
        I('s_endpgm')
        a.raw(head('p2_kernel'))
        a.forget()
        phase2(False)
        a.label('L_END2')
        I('s_endpgm')
    out += a.text()
    out += '.section .rodata,"a"\n.p2align 6\n' + kdesc(k1)
    if not fused:
        out += '.p2align 6\n' + kdesc('p2_kernel')
    open(sys.argv[1], 'w').write(out)


main()
```

```python
import sys
import os
import struct
sys.path.insert(0, os.path.dirname(os.path.abspath(__file__)))
from asmtool import Asm

NAME = 'parallel_sum__linear_kernel_hedgehog__glu_gated_reglu__prompt'
OPT = dict(timing=0, dbgt=0, kvpos=10, fchk=10, achk=5, nfill=5, pf0=3, w2f0=12, fflag=2)
for arg in sys.argv[2:]:
    k, v = arg.split('=')
    OPT[k] = int(v)

WS_KV = 0x1000000
WS_FL = 0x1100000
WS_ST = 0x1120000
WS_CS = 0x1130000
WS_TM = 0x1200000
WS_SIZE = 0x10000000
BIG = 0x40000000
SPIN = 50000
PART = 147456
STL = PART + 1024
DUMMY = PART + 2048
WPH = PART + 4096

sW, sG, sT, sTY, sMB = 's3', 's4', 's5', 's6', 's7'
rX, rGU, rST, rWS, rWD, rWO, rOUT, rDBG, rQKV, rPHI = 8, 12, 16, 20, 24, 28, 32, 36, 40, 44
sA, sB, sC, sD, sE = 's48', 's49', 's50', 's51', 's52'
sHB, sCnt, sKF, sKA, sKO, sH2, sSX = 's53', 's54', 's55', 's56', 's57', 's58', 's59'
STAMP0 = 60

vL, vHo = 1, 10
W2F = 16


def srd(r):
    return 's[%d:%d]' % (r, r + 3)


def vr(b, n=1):
    return 'v[%d:%d]' % (b, b + n - 1) if n > 1 else 'v%d' % b


def f32(x):
    return '0x%08x' % struct.unpack('<I', struct.pack('<f', x))[0]


a = Asm()
I = a.I


def mfma(d, x, y, c=None):
    return 'v_mfma_f32_32x32x16_bf16 %s, %s, %s, %s' % (vr(d, 16), vr(x, 4), vr(y, 4), vr(d, 16) if c is None else c)


nstamp = [0]


def stamp(k):
    if OPT['timing']:
        assert k < 21
        a.raw('    s_memtime s[%d:%d]' % (STAMP0 + 2 * k, STAMP0 + 2 * k + 1))


def stamp_flush():
    if not OPT['timing']:
        return
    a.raw('    s_waitcnt lgkmcnt(0)')
    I('v_mov_b32 v2, 0')
    for k in range(21):
        I('v_writelane_b32 v2, s%d, %d' % (STAMP0 + 2 * k, k))
    I('s_lshl_b32 %s, s2, 3' % sE)
    I('s_add_u32 %s, %s, %s' % (sE, sE, sW))
    I('s_lshl_b32 %s, %s, 8' % (sE, sE))
    I('s_add_u32 %s, %s, 0x%x' % (sE, sE, WS_TM))
    I('v_lshlrev_b32 v3, 2, v%d' % vL)
    I('buffer_store_dword v2, v3, %s, %s offen' % (srd(rWS), sE))


class Fill:
    def __init__(self):
        self.q = []

    def add(self, *items):
        for it in items:
            self.q.append(it)

    def pop(self, n):
        while n > 0 and self.q:
            it = self.q.pop(0)
            if callable(it):
                it()
                n -= 3
            elif isinstance(it, (list, tuple)):
                for s in it:
                    I(s)
                n -= len(it)
            else:
                I(it)
                n -= 1

    def flush(self):
        self.pop(1 << 30)


fill = Fill()


def block(mf, side, nfill=None):
    nfill = OPT['nfill'] if nfill is None else nfill
    for i, m in enumerate(mf):
        I(m)
        for s in (side[i] if i < len(side) else []):
            if callable(s):
                s()
            else:
                I(s)
        fill.pop(nfill)


def spin_check(issue, test):
    lp, done = a.newlabel('SPL'), a.newlabel('SPD')
    test()
    I('s_cbranch_scc1 %s' % done)
    I('s_mov_b32 %s, %d' % (sCnt, SPIN))
    a.label(lp)
    a.auto = False
    n = len(a.vm)
    I('s_sleep 1')
    issue()
    a.raw('    s_waitcnt vmcnt(0)')
    I('s_sub_u32 %s, %s, 1' % (sCnt, sCnt))
    I('s_cbranch_scc1 %s' % done)
    test()
    I('s_cbranch_scc0 %s' % lp)
    del a.vm[n:]
    a.auto = True
    a.label(done)


eD, eX, eA, eT = 80, 96, 100, 108
vSo, vSo3, vXs = 4 + 112, 5 + 112, 6 + 112


def early_issue(pitch):
    I('buffer_load_dwordx4 %s, v%d, %s, 0 offen' % (vr(eX, 4), vXs, srd(rX)))
    I('buffer_load_dwordx4 %s, v%d, %s, 0 offen' % (vr(eD, 4), vSo, srd(rST)))
    for q in (1, 2, 3):
        I('s_mov_b32 %s, %d' % (sA, 16 * pitch * q))
        I('buffer_load_dwordx4 %s, v%d, %s, %s offen' % (vr(eD + 4 * q, 4), vSo if q < 3 else vSo3, srd(rST), sA))


def early_offsets(pitch):
    I('s_mul_i32 %s, %s, 56' % (sB, sW))
    I('v_lshrrev_b32 v12, 2, v%d' % vL)
    I('v_add_u32 v12, %s, v12' % sB)
    I('v_mul_u32_u24 v12, %d, v12' % pitch)
    I('v_and_b32 v13, 3, v%d' % vL)
    I('v_lshl_add_u32 v12, v13, 4, v12')
    I('v_add_u32 v%d, %s, v12' % (vSo, sA))
    I('v_mov_b32 v14, 0x%x' % BIG)
    I('v_cmp_gt_u32 vcc, 32, v%d' % vL)
    I('v_cndmask_b32 v%d, v14, v%d, vcc' % (vSo3, vSo))
    I('s_lshl_b32 %s, %s, 2' % (sB, sG))
    I('s_add_u32 %s, %s, %s' % (sB, sB, sTY))
    I('s_lshl_b32 %s, %s, 4' % (sC, sT))
    I('s_add_u32 %s, %s, %s' % (sSX, sB, sC))
    I('s_lshl_b32 %s, %s, 3' % (sB, sSX))
    I('s_add_u32 %s, %s, %s' % (sB, sB, sW))
    I('s_mul_i32 %s, %s, 896' % (sB, sB))
    I('v_add_u32 v12, %s, v%d' % (sB, vHo))
    I('v_cmp_gt_u32 vcc, 56, v%d' % vL)
    I('v_cndmask_b32 v%d, v14, v12, vcc' % vXs)


def early_fill():
    F = fill.add
    S1, S2, t0, t1, t2, t3 = eT, eT + 1, eT + 2, eT + 3, eT + 4, eT + 5
    F('v_lshlrev_b32 v%d, 16, v%d' % (S1, eX), 'v_and_b32 v%d, 0xffff0000, v%d' % (t1, eX),
      'v_mul_f32 v%d, v%d, v%d' % (S2, S1, S1), 'v_add_f32 v%d, v%d, v%d' % (S1, S1, t1),
      'v_fmac_f32 v%d, v%d, v%d' % (S2, t1, t1))
    for d in range(1, 4):
        F('v_lshlrev_b32 v%d, 16, v%d' % (t0, eX + d), 'v_and_b32 v%d, 0xffff0000, v%d' % (t1, eX + d),
          'v_add_f32 v%d, v%d, v%d' % (S1, S1, t0), 'v_fmac_f32 v%d, v%d, v%d' % (S2, t0, t0),
          'v_add_f32 v%d, v%d, v%d' % (S1, S1, t1), 'v_fmac_f32 v%d, v%d, v%d' % (S2, t1, t1))
    strip = []
    for d in range(4):
        strip += ['v_lshlrev_b32 v%d, 16, v%d' % (eA + 2 * d, eD + d), 'v_and_b32 v%d, 0xffff0000, v%d' % (eA + 2 * d + 1, eD + d)]
    for q in range(1, 4):
        for d in range(4):
            strip += ['v_lshlrev_b32 v%d, 16, v%d' % (t2, eD + 4 * q + d), 'v_and_b32 v%d, 0xffff0000, v%d' % (t3, eD + 4 * q + d),
                      'v_add_f32 v%d, v%d, v%d' % (eA + 2 * d, eA + 2 * d, t2),
                      'v_add_f32 v%d, v%d, v%d' % (eA + 2 * d + 1, eA + 2 * d + 1, t3)]
    red = []
    for m in ('row_shr:1', 'row_shr:2', 'row_shr:4', 'row_shr:8'):
        red.append(['v_add_f32_dpp v%d, v%d, v%d %s row_mask:0xf bank_mask:0xf bound_ctrl:0' % (s, s, s, m) for s in (S1, S2)])
    red.append(['v_add_f32_dpp v%d, v%d, v%d row_bcast:15 row_mask:0xa bank_mask:0xf' % (s, s, s) for s in (S1, S2)])
    red.append(['v_add_f32_dpp v%d, v%d, v%d row_bcast:31 row_mask:0xc bank_mask:0xf' % (s, s, s) for s in (S1, S2)])
    R = eX
    red += [['v_mul_f32 v%d, %s, v%d' % (S1, f32(-1.0 / 448), S1), 'v_mul_f32 v%d, %s, v%d' % (S2, f32(1.0 / 448), S2)],
            ['v_fma_f32 v%d, -v%d, v%d, v%d' % (S2, S1, S1, S2), 'v_cvt_pk_bf16_f32 v%d, v%d, v%d' % (t0, S1, S1)],
            ['v_max_f32 v%d, 0, v%d' % (S2, S2), 'v_lshlrev_b32 v%d, 16, v%d' % (t0, t0)],
            ['v_add_f32 v%d, %s, v%d' % (S2, f32(1e-5), S2), 'v_sub_f32 v%d, v%d, v%d' % (t0, S1, t0)],
            ['v_rsq_f32 v%d, v%d' % (R, S2), 'v_cvt_pk_bf16_f32 v%d, v%d, v%d' % (R + 2, S1, t0)],
            ['v_rcp_f32 v%d, v%d' % (R + 1, S2), 'v_mov_b32 v%d, v%d' % (R + 3, R + 2)]]
    k = 0
    for grp in red:
        F(*strip[k:k + 4])
        k += 4
        F(*grp)
    F(*strip[k:])
    F('s_lshl_b32 %s, %s, 4' % (sA, sW), 's_add_u32 %s, %s, %d' % (sA, sA, STL),
      'v_add_u32 v%d, %d, v%d' % (t0, DUMMY, vHo), 'v_writelane_b32 v%d, %s, 63' % (t0, sA),
      'ds_write_b128 v%d, %s' % (t0, vr(R, 4)))
    for i in range(0, 8, 2):
        F('v_permlane32_swap_b32 v%d, v%d' % (eA + i, eA + i + 1))
    for i in range(0, 8, 2):
        F('v_add_f32 v%d, v%d, v%d' % (eA + i, eA + i, eA + i + 1))
    F('v_and_b32 v%d, 3, v%d' % (t0, vL), 'v_bfe_u32 v%d, v%d, 4, 1' % (t1, vL))
    F('v_permlane16_swap_b32 v%d, v%d' % (eA, eA + 2), 'v_permlane16_swap_b32 v%d, v%d' % (eA + 4, eA + 6))
    F('v_lshlrev_b32 v%d, 5, v%d' % (t0, t0), 'v_lshl_add_u32 v%d, v%d, 3, v%d' % (t0, t1, t0))
    F('v_add_f32 v%d, v%d, v%d' % (eA, eA, eA + 2), 'v_add_f32 v%d, v%d, v%d' % (eA + 4, eA + 4, eA + 6))
    F('v_lshrrev_b32 v%d, 5, v%d' % (t1, vL), 'v_lshl_add_u32 v%d, v%d, 2, v%d' % (t0, t1, t0))
    F(*['v_add_f32_dpp v%d, v%d, v%d row_shr:4 row_mask:0xf bank_mask:0xf bound_ctrl:0' % (s, s, s) for s in (eA, eA + 4)])
    F('s_lshl_b32 %s, %s, 7' % (sA, sW), 's_add_u32 %s, %s, %d' % (sA, sA, PART), 'v_add_u32 v%d, %s, v%d' % (t0, sA, t0),
      'v_and_b32 v%d, 15, v%d' % (t1, vL))
    F(*['v_add_f32_dpp v%d, v%d, v%d row_shr:8 row_mask:0xf bank_mask:0xf bound_ctrl:0' % (s, s, s) for s in (eA, eA + 4)])
    F(['v_cmp_le_u32 vcc, 12, v%d' % t1, 'v_add_u32 v%d, %d, v%d' % (t2, DUMMY, vHo),
       'v_cndmask_b32 v%d, v%d, v%d, vcc' % (t0, t2, t0)])
    F('ds_write2_b32 v%d, v%d, v%d offset1:4' % (t0, eA, eA + 4))


def early_publish(sCol, nvalid_s):
    t = eT
    I('s_cmp_lg_u32 %s, 0' % sW)
    with a.skip_if('s_cbranch_scc1'):
        I('v_and_b32 v%d, 31, v%d' % (t, vL))
        I('v_lshrrev_b32 v%d, 5, v%d' % (t + 1, vL))
        I('v_lshlrev_b32 v%d, 9, v%d' % (t + 1, t + 1))
        I('v_lshl_add_u32 v%d, v%d, 2, v%d' % (t + 1, t, t + 1))
        I('v_add_u32 v%d, %d, v%d' % (t + 1, PART, t + 1))
        I('v_add_u32 v%d, %d, v%d' % (t + 2, STL, vHo))
        I('ds_read2_b32 %s, v%d offset1:32' % (vr(eA, 2), t + 1))
        I('ds_read2_b32 %s, v%d offset0:64 offset1:96' % (vr(eA + 2, 2), t + 1))
        I('ds_read_b128 %s, v%d' % (vr(eX, 4), t + 2))
        I('v_mov_b32 v%d, 0x%x' % (t + 3, BIG))
        I('v_lshl_add_u32 v%d, v%d, 3, %s' % (t + 1, vL, sCol))
        I('v_cmp_gt_u32 vcc, %s, v%d' % (nvalid_s, vL))
        I('v_cndmask_b32 v%d, v%d, v%d, vcc' % (t + 1, t + 3, t + 1))
        I('s_lshl_b32 %s, %s, 7' % (sA, sSX))
        I('s_add_u32 %s, %s, 0x%x' % (sA, sA, WS_ST))
        I('v_cmp_gt_u32 vcc, 8, v%d' % vL)
        I('v_cndmask_b32 v%d, v%d, v%d, vcc' % (t + 2, t + 3, vHo))
        I('v_add_f32 v%d, v%d, v%d' % (eA, eA, eA + 1))
        I('v_add_f32 v%d, v%d, v%d' % (eA + 2, eA + 2, eA + 3))
        I('v_add_f32 v%d, v%d, v%d' % (eA, eA, eA + 2))
        I('v_mov_b32 v%d, v%d' % (eA + 1, eA))
        I('buffer_store_dwordx4 %s, v%d, %s, %s offen sc1' % (vr(eX, 4), t + 2, srd(rWS), sA), tag='pub')
        I('v_permlane32_swap_b32 v%d, v%d' % (eA, eA + 1))
        I('v_add_f32 v%d, v%d, v%d' % (eA, eA, eA + 1))
        I('v_cvt_pk_bf16_f32 v%d, v%d, v%d' % (eA + 2, eA, eA))
        I('v_lshlrev_b32 v%d, 16, v%d' % (eA + 1, eA + 2))
        I('v_sub_f32 v%d, v%d, v%d' % (eA, eA, eA + 1))
        I('v_cvt_pk_bf16_f32 v%d, v%d, v%d' % (eA + 3, eA, eA))
        I('buffer_store_dwordx2 %s, v%d, %s, 0 offen sc1' % (vr(eA + 2, 2), t + 1, srd(rWS)), tag='pub')


def early_byte():
    I('s_cmp_lg_u32 %s, 0' % sW)
    with a.skip_if('s_cbranch_scc1'):
        a.wait_tag('pub')
        I('v_mov_b32 v%d, 1' % eT)
        I('v_mov_b32 v%d, %s' % (eT + 1, sSX))
        I('s_mov_b64 exec, 1')
        I('buffer_store_byte v%d, v%d, %s, 0 offen sc1' % (eT, eT + 1, srd(rDBG)))
        I('s_mov_b64 exec, -1')


def zero_init():
    I('s_cmp_lg_u32 %s, 0' % sW)
    with a.skip_if('s_cbranch_scc1'):
        I('v_and_b32 v12, 31, v%d' % vL)
        I('v_cmp_eq_u32 vcc, 29, v12')
        I('s_and_b32 %s, %s, 6' % (sA, sSX))
        I('s_cmp_eq_u32 %s, 6' % sA)
        I('s_cselect_b32 %s, 0, -1' % sA)
        I('s_and_b32 vcc_hi, vcc_hi, %s' % sA)
        I('v_mov_b32 v13, 0')
        I('v_cndmask_b32 v14, 0, 1.0, vcc')
        I('v_lshlrev_b32 v15, 2, v%d' % vL)
        I('s_lshl_b32 %s, %s, 9' % (sA, sSX))
        I('s_add_u32 %s, %s, 0x%x' % (sA, sA, WS_KV))
        I('buffer_store_dword v14, v15, %s, %s offen sc1' % (srd(rWS), sA), tag='pub0')
        I('buffer_store_dword v14, v15, %s, %s offen offset:256 sc1' % (srd(rWS), sA), tag='pub0')
        I('s_lshl_b32 %s, %s, 7' % (sA, sSX))
        I('s_add_u32 %s, %s, 0x%x' % (sA, sA, WS_FL))
        I('v_lshlrev_b32 v15, 2, v12')
        I('buffer_store_dword v13, v15, %s, %s offen sc1' % (srd(rWS), sA), tag='pub0')


vDB, vDo = 14, 15


def dbg_issue():
    I('buffer_load_dword v%d, v%d, %s, 0 offen sc1' % (vDB, vDo, srd(rDBG)))


def dbg_check():
    def test():
        I('v_cmp_eq_u32 vcc, 0x01010101, v%d' % vDB)
        I('s_cmp_eq_u64 vcc, -1')
    spin_check(dbg_issue, test)


vFLo = 11


def flag_store(val, off=0):
    I('v_mov_b32 v12, %d' % val)
    I('s_mov_b64 exec, 1')
    I('buffer_store_dword v12, v%d, %s, 0 offen offset:%d sc1' % (vFLo, srd(rWS), off))
    I('s_mov_b64 exec, -1')


def ffn_tile(A, r2, o, soff, off):
    pr = r2 & ~1
    sel = 'op_sel:[0,1] op_sel_hi:[1,1]' if r2 & 1 else 'op_sel_hi:[1,0]'
    for i in range(0, 8, 2):
        I('v_pk_mul_f32 %s, %s, %s %s' % (vr(A + 8 + i, 2), vr(A + 8 + i, 2), vr(pr, 2), sel))
    for i in range(8):
        I('v_max_f32 v%d, 0, v%d' % (A + i, A + i))
    for i in range(0, 8, 2):
        I('v_pk_mul_f32 %s, %s, %s' % (vr(A + i, 2), vr(A + i, 2), vr(A + 8 + i, 2)))
    for i in range(4):
        I('v_cvt_pk_bf16_f32 v%d, v%d, v%d' % (o + i, A + 2 * i, A + 2 * i + 1))
    I('buffer_store_dwordx4 %s, v%d, %s, %s offen offset:%d sc1' % (vr(o, 4), vHo, srd(rWS), soff, off), tag='h')


def pack8(dst, src):
    for i in range(8):
        I('v_cvt_pk_bf16_f32 v%d, v%d, v%d' % (dst + i, src + 2 * i, src + 2 * i + 1))
```

```python
from g2a import *

LOG2E = 1.4426950408889634


def lane_fields(hh, r3, c, gp):
    I('v_lshrrev_b32 v%d, 5, v%d' % (hh, vL))
    I('v_bfe_u32 v%d, v%d, 2, 2' % (r3, vL))
    I('v_and_b32 v%d, 3, v%d' % (c, vL))
    I('v_bfe_u32 v%d, v%d, 4, 1' % (gp, vL))


def prologue():
    I('s_cmp_ge_u32 s2, 256')
    I('s_cbranch_scc1 L_END')
    if OPT['dbgt']:
        I('s_memtime s[96:97]')
        I('s_memrealtime s[98:99]')
    if OPT['timing']:
        for k in range(1, 21):
            I('s_mov_b32 s%d, 0' % (STAMP0 + 2 * k))
    stamp(0)
    I('s_load_dwordx2 s[%d:%d], s[0:1], 0' % (rX, rX + 1))
    I('s_load_dwordx2 s[%d:%d], s[0:1], 8' % (rQKV, rQKV + 1))
    I('v_lshrrev_b32 v2, 6, v0')
    I('v_and_b32 v%d, 63, v0' % vL)
    I('v_readfirstlane_b32 %s, v2' % sW)
    I('s_and_b32 %s, s2, 3' % sG)
    I('s_bfe_u32 %s, s2, 0x10002' % sT)
    I('s_lshl_b32 %s, %s, 3' % (sT, sT))
    I('s_bfe_u32 %s, s2, 0x30003' % sA)
    I('s_add_u32 %s, %s, %s' % (sT, sT, sA))
    I('s_lshr_b32 %s, s2, 6' % sTY)
    I('s_lshl_b32 %s, %s, 10' % (sMB, sW))
    I('s_and_b32 %s, %s, 2' % (sA, sW))
    I('s_lshl_b32 %s, %s, 2' % (sA, sA))
    I('s_add_u32 %s, %s, 40' % (sA, sA))
    I('s_load_dwordx2 s[%d:%d], s[0:1], %s' % (rGU, rGU + 1, sA))
    I('s_and_b32 %s, %s, 1' % (sD, sTY))
    I('s_lshl_b32 %s, %s, 4' % (sD, sD))
    I('s_add_u32 %s, %s, %s' % (sD, sD, sT))
    I('s_cmp_ge_u32 %s, 14' % sD)
    I('s_cselect_b32 %s, 48, 40' % sB)
    I('s_cmp_ge_u32 %s, 2' % sTY)
    I('s_cselect_b32 %s, 8, %s' % (sB, sB))
    I('s_load_dwordx2 s[%d:%d], s[0:1], %s' % (rST, rST + 1, sB))
    for r, o in ((rWS, 80), (rDBG, 72), (rPHI, 16), (rWD, 56), (rWO, 24), (rOUT, 64)):
        I('s_load_dwordx2 s[%d:%d], s[0:1], %d' % (r, r + 1, o))
    for r, n in ((rX, 2048 * 896), (rGU, 448 * 3584), (rWS, WS_SIZE), (rWD, 1792 * 896), (rWO, 448 * 896),
                 (rOUT, 2048 * 896), (rDBG, 256), (rQKV, 448 * 2688), (rPHI, 16 * 1568), (rST, 0)):
        I('s_mov_b32 s%d, 0x%x' % (r + 2, n))
        I('s_mov_b32 s%d, 0x00020000' % (r + 3))
    I('v_lshlrev_b32 v%d, 4, v%d' % (vHo, vL))
    I('s_cbranch_scc1 L_A')


vPO = 13


def late_setup():
    I('s_lshl_b32 %s, %s, 7' % (sA, sSX))
    I('s_lshl_b32 %s, %s, 2' % (sB, sW))
    I('s_add_u32 %s, %s, %s' % (sA, sA, sB))
    I('s_add_u32 %s, %s, 0x%x' % (sA, sA, WS_FL))
    I('v_mov_b32 v%d, %s' % (vFLo, sA))
    I('v_lshlrev_b32 v%d, 2, v%d' % (vDo, vL))
    I('s_lshr_b32 %s, s2, 3' % sA)
    I('s_lshl_b32 %s, %s, 3' % (sA, sA))
    I('s_add_u32 %s, %s, %s' % (sA, sA, sW))
    I('s_cmp_ge_u32 %s, 196' % sA)
    for k in range(3):
        I('s_cselect_b32 s%d, s%d, s%d' % (rST + k, rWO + k, rWD + k))
    I('s_cselect_b32 %s, 196, 0' % sB)
    I('s_sub_u32 %s, %s, %s' % (sA, sA, sB))
    I('s_lshl_b32 %s, %s, 13' % (sA, sA))
    I('v_lshlrev_b32 v%d, 7, v%d' % (vPO, vL))
    I('v_add_u32 v%d, %s, v%d' % (vPO, sA, vPO))


def prefetch(wsel):
    def f():
        lo, hi = wsel
        I('s_sub_u32 %s, %s, %d' % (sD, sW, lo))
        I('s_cmp_ge_u32 %s, %d' % (sD, hi - lo))
        with a.skip_if('s_cbranch_scc1'):
            I('buffer_load_dword v%d, v%d, %s, 0 offen' % (vPO, vPO, srd(rST)))
    return f


vW0, vW1, vW1m, vR2a, vR2b, vH0, vH1, vPo = 2, 3, 4, 5, 6, 7, 8, 9
A2, HB = 160, 224


class W2:
    def __init__(self, regs):
        self.vW0, self.vW1, self.vW1m, self.vRa, self.vRb = regs
        self.base = 0
        self.loc = {}

    def setup(self, t0, t1, t2):
        L = []
        A = L.append
        A('s_lshr_b32 %s, s2, 3' % sA)
        A('s_mul_i32 %s, %s, 37' % (sB, sA))
        A('s_lshr_b32 %s, %s, 8' % (sB, sB))
        A('s_mul_i32 %s, %s, 7' % (sC, sB))
        A('s_sub_u32 %s, %s, %s' % (sC, sA, sC))
        A(['s_cmp_ge_u32 %s, 28' % sA, 's_cselect_b32 s%d, 0, s%d' % (rWD + 2, rWD + 2),
           's_cselect_b32 s%d, 0, s%d' % (rWO + 2, rWO + 2)])
        A('s_and_b32 %s, s2, 7' % sA)
        A('s_lshl_b32 %s, %s, 2' % (sA, sA))
        A('s_add_u32 %s, %s, %s' % (sA, sA, sB))
        A('s_lshl_b32 %s, %s, 3' % (sH2, sA))
        A('s_add_u32 %s, %s, %s' % (sH2, sH2, sC))
        A('s_lshl_b32 %s, %s, 7' % (sC, sC))
        A('v_lshrrev_b32 v%d, 3, v%d' % (t0, vL))
        A('v_mul_u32_u24 v%d, 896, v%d' % (t0, t0))
        A('v_bfe_u32 v%d, v%d, 4, 1' % (t1, vL))
        A('v_lshlrev_b32 v%d, 2, v%d' % (t1, t1))
        A('v_and_b32 v%d, 7, v%d' % (t2, vL))
        A('v_xor_b32 v%d, v%d, v%d' % (t1, t1, t2))
        A('v_lshl_add_u32 v%d, v%d, 4, v%d' % (t0, t1, t0))
        A('v_add_u32 v%d, %s, v%d' % (self.vW0, sC, t0))
        A('v_add_u32 v%d, %d, v%d' % (self.vW1, 8 * 896 - 1024, self.vW0))
        A(['v_mov_b32 v%d, 0x%x' % (t0, BIG), 'v_cmp_gt_u32 vcc, 32, v%d' % vL,
           'v_cndmask_b32 v%d, v%d, v%d, vcc' % (self.vW1m, t0, self.vW1)])
        A('s_lshr_b32 %s, %s, 1' % (sA, sW))
        A('s_and_b32 %s, %s, 1' % (sB, sW))
        A('s_mul_i32 %s, %s, 28' % (sA, sA))
        A('s_mul_i32 %s, %s, 12' % (sC, sB))
        A('s_add_u32 %s, %s, %s' % (sKF, sA, sC))
        A('s_lshl_b32 %s, %s, 1' % (sC, sB))
        A('s_add_u32 %s, %s, %s' % (sKA, sA, sC))
        A('s_add_u32 %s, %s, 24' % (sKA, sKA))
        A('s_mul_i32 %s, %s, %d' % (sKO, sW, 56 * 896))
        A('v_lshrrev_b32 v%d, 5, v%d' % (t0, vL))
        A('v_bfe_u32 v%d, v%d, 2, 2' % (t1, vL))
        A('v_lshl_add_u32 v%d, v%d, 2, v%d' % (t0, t0, t1))
        A('v_lshlrev_b32 v%d, 7, v%d' % (t0, t0))
        A('v_lshrrev_b32 v%d, 1, v%d' % (t1, t1))
        A('v_lshl_add_u32 v%d, v%d, 6, v%d' % (t0, t1, t0))
        A('v_bfe_u32 v%d, v%d, 4, 1' % (t1, vL))
        A('v_lshl_add_u32 v%d, v%d, 5, v%d' % (t0, t1, t0))
        A('v_and_b32 v%d, 3, v%d' % (t1, vL))
        A('v_lshl_add_u32 v%d, v%d, 3, v%d' % (t0, t1, t0))
        A('s_bfe_u32 %s, %s, 0x10001' % (sA, sW))
        A('s_lshl_b32 %s, %s, 6' % (sA, sA))
        A('s_lshr_b32 %s, %s, 2' % (sB, sW))
        A('s_lshl_b32 %s, %s, 5' % (sB, sB))
        A('s_add_u32 %s, %s, %s' % (sA, sA, sB))
        A('s_lshl_b32 %s, %s, 12' % (sB, sW))
        A('s_add_u32 %s, %s, %s' % (sA, sA, sB))
        A('v_xor_b32 v%d, %s, v%d' % (self.vRa, sA, t0))
        A('v_xor_b32 v%d, 64, v%d' % (self.vRb, self.vRa))
        return L

    @staticmethod
    def kinfo(i):
        if i < 2:
            return ('A', i)
        if i < 14:
            return ('F', i - 2)
        return ('O', i - 14)

    def dma(self, i, loc):
        self.loc[i] = loc
        kind, j = self.kinfo(i)
        I('s_lshl_b32 %s, %s, 2' % (sD, sMB))
        I('s_add_u32 m0, %s, %d' % (sD, loc))
        if kind == 'O':
            I('s_add_u32 %s, %s, %d' % (sE, sKO, (28 * (j >> 1) + 16 * (j & 1)) * 896))
            r = rWO
        else:
            I('s_add_u32 %s, %s, %d' % (sE, sKF if kind == 'F' else sKA, j))
            I('s_mul_i32 %s, %s, %d' % (sE, sE, 16 * 896))
            r = rWD
        I('buffer_load_dwordx4 v%d, %s, %s offen lds' % (self.vW0, srd(r), sE), tag=('w2', i))
        I('buffer_load_dwordx4 v%d, %s, %s offen offset:1024 lds'
          % (self.vW1m if (kind == 'O' and j & 1) else self.vW1, srd(r), sE), tag=('w2', i))

    def read(self, i):
        loc = self.loc[i]
        if not (self.base <= loc and loc + 2048 <= self.base + 65536):
            nb = loc & ~0xffff
            for v in (self.vRa, self.vRb):
                I('v_add_u32 v%d, %d, v%d' % (v, nb - self.base, v))
            self.base = nb
        a.wait_tag(('w2', i))
        for nn, v in enumerate((self.vRa, self.vRb)):
            for s in range(2):
                I('ds_read_b64_tr_b16 %s, v%d offset:%d' % (vr(W2F + 8 * i + 4 * nn + 2 * s, 2), v, loc - self.base + 1024 * s),
                  tag=('w2r', i))

    def wait_read(self, i):
        best = None
        for k, e in enumerate(a.lg):
            if e[2] == ('w2r', i):
                n = a._count_younger(a.lg, k)
                best = n if best is None else min(best, n)
        if best is not None:
            a.wait(lg=best)


class W2Stream:
    def __init__(self, w2):
        self.w2 = w2
        self.free = []
        self.nd = 0
        self.nr = 0

    def give(self, *bases):
        for b in bases:
            self.free += [(b, None), (b + 2048, None)]

    def issue(self, n=99):
        while n > 0 and self.free and self.nd < 18:
            loc, dep = self.free.pop(0)
            if dep is not None:
                self.w2.wait_read(dep)
            self.w2.dma(self.nd, loc)
            self.nd += 1
            n -= 1

    def step(self):
        if self.nr >= self.nd:
            return
        i = self.nr
        self.w2.read(i)
        self.nr += 1
        self.issue()
        self.free.append((self.w2.loc[i], i))


def path_F():
    vXo, vWo = 2, 3
    vRX, vRW = [4, 5, 7, 8], [6, 9]
    FB = [120, 140]
    ACC = 160
    STf, CSf = [96, 102], 108
    w2 = W2((75, 76, 77, 78, 79))
    ws = W2Stream(w2)
    I('v_lshrrev_b32 v12, 2, v%d' % vL)
    I('s_lshl_b32 %s, %s, 7' % (sA, sT))
    I('s_lshl_b32 %s, %s, 4' % (sB, sW))
    I('s_add_u32 %s, %s, %s' % (sA, sA, sB))
    I('v_add_u32 v12, %s, v12' % sA)
    I('v_mul_u32_u24 v12, 896, v12')
    I('v_lshrrev_b32 v13, 4, v%d' % vL)
    I('v_xor_b32 v13, v13, v%d' % vL)
    I('v_and_b32 v13, 3, v13')
    I('v_lshl_add_u32 v%d, v13, 4, v12' % vXo)
    I('s_lshr_b32 %s, %s, 2' % (sA, sW))
    I('s_lshl_b32 %s, %s, 2' % (sA, sA))
    I('s_and_b32 %s, %s, 1' % (sB, sW))
    I('s_add_u32 %s, %s, %s' % (sA, sA, sB))
    I('s_lshl_b32 %s, %s, 2' % (sA, sA))
    I('s_bfe_u32 %s, %s, 0x10001' % (sB, sW))
    I('v_lshrrev_b32 v12, 5, v%d' % vL)
    I('v_bfe_u32 v13, v%d, 3, 2' % vL)
    I('v_lshl_add_u32 v12, v12, 3, v13')
    I('v_add_u32 v12, %s, v12' % sA)
    I('v_mul_u32_u24 v12, 3584, v12')
    I('v_and_b32 v13, 2, v13')
    I('v_bfe_u32 v14, v%d, 1, 2' % vL)
    I('v_sub_u32 v14, v14, v13')
    I('v_subrev_u32 v14, %s, v14' % sB)
    I('v_and_b32 v14, 3, v14')
    I('v_lshl_add_u32 v12, v14, 5, v12')
    I('v_and_b32 v13, 1, v%d' % vL)
    I('v_lshl_add_u32 v12, v13, 4, v12')
    I('s_mul_i32 %s, %s, 7' % (sA, sG))
    I('s_mul_i32 %s, %s, 3' % (sB, sTY))
    I('s_add_u32 %s, %s, %s' % (sKO, sA, sB))
    I('s_lshl_b32 %s, %s, 7' % (sB, sKO))
    I('v_add_u32 v%d, %s, v12' % (vWo, sB))
    I('s_sub_u32 %s, %s, 14' % (sB, sD))
    I('s_cmp_ge_u32 %s, 14' % sD)
    I('s_cselect_b32 %s, %s, %s' % (sB, sB, sD))
    I('s_cselect_b32 %s, %d, 0' % (sKA, 1792 * 8))
    I('s_lshl_b32 %s, %s, 7' % (sA, sA))
    I('s_lshl_b32 %s, %s, 6' % (sB, sB))
    I('s_add_u32 %s, %s, %s' % (sA, sA, sB))
    I('s_lshl_b32 %s, %s, 2' % (sB, sA))
    I('s_add_u32 %s, %s, %s' % (sKA, sKA, sB))
    I('s_add_u32 %s, %s, 0x%x' % (sKA, sKA, WS_CS))
    I('s_cmp_lt_u32 %s, 28' % sD)
    I('s_cselect_b32 s%d, %d, 0' % (rST + 2, 448 * 3584))
    I('s_cselect_b32 %s, 32, 0' % sKF)

    def dmas(s):
        slot = (s % 4) * 32768

        def x():
            I('s_add_u32 m0, %s, %d' % (sMB, slot))
            I('s_mov_b32 %s, %d' % (sD, 64 * s))
            I('s_mov_b32 %s, %d' % (sE, 32 * 3584 * s))
            I('buffer_load_dwordx4 v%d, %s, %s offen lds' % (vXo, srd(rX), sD), tag=('st', s))

        def w(u):
            def f():
                I('s_add_u32 m0, %s, %d' % (sMB, slot + 8192 * (1 + u) - 128 * u))
                I('buffer_load_dwordx4 v%d, %s, %s offen offset:%d lds' % (vWo, srd(rGU), sE, 128 * u), tag=('st', s))
            return f
        return [x, w(0), w(1), w(2)]

    early_offsets(3584)
    a.raw('    s_waitcnt lgkmcnt(0)')
    for d in dmas(0):
        d()
    early_issue(3584)
    for s in (1, 2):
        for d in dmas(s):
            d()
    stamp(1)
    zero_init()
    hh, r3, c, gp = 12, 13, 14, 15
    lane_fields(hh, r3, c, gp)
    I('v_xor_b32 v4, v%d, v%d' % (hh, r3))
    I('v_lshlrev_b32 v4, 4, v4')
    I('v_and_b32 v5, 31, v%d' % vL)
    I('v_lshl_add_u32 v4, v5, 6, v4')
    I('s_and_b32 %s, %s, 1' % (sA, sW))
    I('s_lshl_b32 %s, %s, 12' % (sA, sA))
    I('v_add_u32 v4, %s, v4' % sA)
    I('v_xor_b32 v5, 32, v4')
    I('v_lshl_add_u32 v6, v%d, 2, v%d' % (hh, r3))
    I('v_lshlrev_b32 v6, 7, v6')
    I('v_lshl_add_u32 v6, v%d, 11, v6' % gp)
    I('v_lshl_add_u32 v6, v%d, 3, v6' % c)
    I('v_and_b32 v7, 2, v%d' % r3)
    I('s_lshr_b32 %s, %s, 1' % (sA, sW))
    I('v_add3_u32 v7, v7, v%d, %s' % (gp, sA))
    I('v_and_b32 v7, 3, v7')
    I('v_lshl_add_u32 v6, v7, 5, v6')
    for k in range(3):
        I('v_add_u32 v%d, 65536, v%d' % (7 + k, 4 + k))
    I('s_lshl_b32 %s, %s, 1' % (sB, sT))
    I('s_and_b32 %s, %s, 1' % (sC, sW))
    I('s_add_u32 %s, %s, %s' % (sB, sB, sC))
    I('s_mul_i32 %s, %s, %d' % (sHB, sB, 2 * 144))
    I('s_lshl_b32 %s, %s, 2' % (sB, sKO))
    I('s_add_u32 %s, %s, %s' % (sB, sB, sA))
    I('s_add_u32 %s, %s, %s' % (sHB, sHB, sB))
    I('s_lshl_b32 %s, %s, 10' % (sHB, sHB))
    I('s_lshl_b32 %s, %s, 7' % (sH2, sB))
    early_fill()

    def reads(s, ks, b):
        hi = (s % 4) >> 1
        o = (s % 2) * 32768
        f = FB[b]
        x = ['ds_read_b128 %s, v%d offset:%d' % (vr(f + 4 * ts, 4), vRX[2 * hi + ks], o + 2048 * ts) for ts in range(2)]
        w = [['ds_read_b64_tr_b16 %s, v%d offset:%d' % (vr(f + 8 + 4 * u + 2 * sc, 2), vRW[hi],
                                                       o + 8192 * (1 + u) + 4096 * ks + 1024 * sc) for sc in range(2)]
             for u in range(3)]
        return [[x[0]] + w[0], w[1] + [w[2][0]], [w[2][1], x[1]]]

    def mf(b, first=False):
        f = FB[b]
        return [mfma(ACC + 16 * (3 * ts + u), f + 8 + 4 * u, f + 4 * ts, '0' if first else None)
                for ts in range(2) for u in range(3)]

    def stcs_loads():
        t0, t1 = 72, 73
        I('v_and_b32 v%d, 31, v%d' % (t0, vL))
        I('v_lshlrev_b32 v%d, 4, v%d' % (t1, t0))
        I('s_lshl_b32 %s, %s, 1' % (sA, sT))
        I('s_and_b32 %s, %s, 1' % (sB, sW))
        I('s_add_u32 %s, %s, %s' % (sA, sA, sB))
        I('s_lshl_b32 %s, %s, 10' % (sA, sA))
        I('s_add_u32 %s, %s, 0x%x' % (sA, sA, WS_ST))
        for ts in range(2):
            I('buffer_load_dwordx4 %s, v%d, %s, %s offen offset:%d sc1' % (vr(STf[ts], 4), t1, srd(rWS), sA, 512 * ts))
        I('v_and_b32 v%d, 15, v%d' % (t1, vL))
        I('v_lshlrev_b32 v%d, 3, v%d' % (t1, t1))
        I('v_lshrrev_b32 v%d, 4, v%d' % (t0, vL))
        I('v_mul_u32_u24 v%d, %d, v%d' % (vDB, 1792 * 8, t0))
        I('v_add_u32 v%d, v%d, v%d' % (t1, t1, vDB))
        I('v_lshrrev_b32 v%d, 1, v%d' % (t0, t0))
        I('v_lshl_add_u32 v%d, v%d, 30, v%d' % (t1, t0, t1))
        I('s_add_u32 %s, %s, 0x%x' % (sA, sH2, WS_CS))
        for u in range(3):
            I('buffer_load_dwordx2 %s, v%d, %s, %s offen offset:%d sc1' % (vr(CSf + 4 * u, 2), t1, srd(rWS), sA, 512 * u))
        for r in [STf[0] + 4, STf[0] + 5, STf[1] + 4, STf[1] + 5] + [CSf + 4 * u + k for u in range(3) for k in (2, 3)]:
            fill.add('v_mov_b32 v%d, 0' % r)

    for s in range(14):
        if s == 2:
            fill.flush()
        a.wait_tag(('st', s), lg=0)
        I('s_barrier')
        if s in (0, 1, 4, 8, 12):
            stamp({0: 2, 1: 3, 4: 4, 8: 5, 12: 6}[s])
        d = dmas(s + 3) if s + 3 < 14 else [None] * 4
        rd = reads(s, 0, 0)
        side = rd + [[d[0]], [d[1]], []]
        if s == 0:
            for g in side:
                for x in g:
                    x() if callable(x) else I(x)
            fill.pop(24)
        else:
            side = [[x for x in g if x] for g in side]
            if s == 2:
                side[5].append(lambda: early_publish(sKA, sKF))
            if s == OPT['fchk']:
                side[5] += [dbg_check, stcs_loads]
            if s >= OPT['w2f0']:
                side[3].append(lambda: ws.issue(1))
                side[4].append(lambda: ws.issue(1))
            block(mf(1), side)
        side = reads(s, 1, 1) + [[d[2]], [d[3]], []]
        side = [[x for x in g if x] for g in side]
        if s == 3:
            side[5].append(early_byte)
        if s == 2:
            side[5].append(late_setup)
        if OPT['pf0'] <= s < OPT['pf0'] + 8:
            w = s - OPT['pf0']
            side[5].append(prefetch((w, w + 1)))
        if s == OPT['fchk'] - 1:
            side[5].append(dbg_issue)
        if s == OPT['fchk']:
            fill.add(*w2.setup(72, 73, 74))
        if s == OPT['w2f0'] - 1:
            side[5].append(fill.flush)
            ws.give(131072, 65536)
        if s == 12:
            ws.give(98304)
        if s == 13:
            ws.give(0)
        if s >= OPT['w2f0']:
            side[3].append(lambda: ws.issue(1))
            side[4].append(lambda: ws.issue(1))
        block(mf(0, s == 0), side)
    stamp(7)
    block(mf(1), [[], [lambda: ws.issue(1)], [], [lambda: ws.issue(1)]])
    for ts in range(2):
        for u in range(3):
            I(mfma(ACC + 16 * (3 * ts + u), CSf + 4 * u, STf[ts] + 2))
    n = 0
    for ts in range(2):
        I('s_add_u32 %s, %s, %d' % (sA, sHB, 144 * 1024 * ts))
        for u in range(3):
            if u:
                I('s_add_u32 %s, %s, 4096' % (sA, sA))
            ffn_tile(ACC + 16 * (3 * ts + u), STf[ts] + 1, FB[0] + 4 * n, sA, 0)
            n += 1
            if n % 2 == 0 and n < 6:
                ws.step()
    stamp(8)
    for d, s_ in zip((vW0, vW1, vW1m, vR2a, vR2b), (w2.vW0, w2.vW1, w2.vW1m, w2.vRa, w2.vRb)):
        I('v_mov_b32 v%d, v%d' % (d, s_))
    w2.vW0, w2.vW1, w2.vW1m, w2.vRa, w2.vRb = vW0, vW1, vW1m, vR2a, vR2b
    for k in range(OPT['fflag']):
        ws.step()
    a.wait_tag('h')
    flag_store(1)
    stamp(9)
    p2_setup()
    while ws.nr < 18:
        ws.step()
    a.wait(lg=0)
    stamp(10)
    I('s_branch L_H')


slow_blocks = []


def exps(P, En, lab):
    M = En
    I('v_max3_f32 v%d, |v%d|, |v%d|, |v%d|' % (M, P, P + 1, P + 2))
    I('v_max3_f32 v%d, |v%d|, |v%d|, |v%d|' % (M + 1, P + 3, P + 4, P + 5))
    for i in range(6, 16, 4):
        I('v_max3_f32 v%d, |v%d|, |v%d|, v%d' % (M, P + i, P + i + 1, M))
        if i + 3 < 16:
            I('v_max3_f32 v%d, |v%d|, |v%d|, v%d' % (M + 1, P + i + 2, P + i + 3, M + 1))
    I('v_max_f32 v%d, v%d, v%d' % (M, M, M + 1))
    I('v_cmp_nle_f32 vcc, v%d, %s' % (M, sCnt))
    I('s_cbranch_vccnz %s_S' % lab)
    for i in range(16):
        I('v_exp_f32 v%d, -v%d' % (En + i, P + i))
        I('v_exp_f32 v%d, v%d' % (P + i, P + i))
    a.label(lab + '_R')
    a.flush_hazards(1)
    slow_blocks.append((P, En, lab))


def emit_slow(P, En, lab):
    M, m, M2, m2 = 12, 13, 14, 15
    a.label(lab + '_S')
    a.auto = False
    I('v_max3_f32 v%d, v%d, v%d, v%d' % (M, P, P + 1, P + 2))
    I('v_min3_f32 v%d, v%d, v%d, v%d' % (m, P, P + 1, P + 2))
    for i in range(3, 11, 2):
        I('v_max3_f32 v%d, v%d, v%d, v%d' % (M, M, P + i, P + i + 1))
        I('v_min3_f32 v%d, v%d, v%d, v%d' % (m, m, P + i, P + i + 1))
    I('v_max_f32 v%d, v%d, v%d' % (M, M, P + 11))
    I('v_min_f32 v%d, v%d, v%d' % (m, m, P + 11))
    I('s_mov_b32 exec_hi, 0')
    for i in (12, 14):
        I('v_max3_f32 v%d, v%d, v%d, v%d' % (M, M, P + i, P + i + 1))
        I('v_min3_f32 v%d, v%d, v%d, v%d' % (m, m, P + i, P + i + 1))
    I('s_mov_b32 exec_hi, -1')
    I('v_mov_b32 v%d, v%d' % (M2, M))
    I('v_mov_b32 v%d, v%d' % (m2, m))
    I('v_permlane32_swap_b32 v%d, v%d' % (M, M2))
    I('v_permlane32_swap_b32 v%d, v%d' % (m, m2))
    I('v_max_f32 v%d, v%d, v%d' % (M, M, M2))
    I('v_min_f32 v%d, v%d, v%d' % (m, m, m2))
    for i in range(16):
        I('v_sub_f32 v%d, v%d, v%d' % (En + i, m, P + i))
        I('v_sub_f32 v%d, v%d, v%d' % (P + i, P + i, M))
    for i in range(16):
        I('v_exp_f32 v%d, v%d' % (En + i, En + i))
        I('v_exp_f32 v%d, v%d' % (P + i, P + i))
    I('s_mov_b32 exec_lo, 0')
    for i in range(12, 16):
        I('v_mov_b32 v%d, 0' % (P + i))
        I('v_mov_b32 v%d, 0' % (En + i))
    I('s_mov_b32 exec_lo, -1')
    I('s_branch %s_R' % lab)
    a.auto = True


def path_A():
    SL = 49152
    vX0, vX1, vQo, vGo = 2, 3, 4, 5
    vRX, vRQ, vRG = [6, 7, 8, 9], 16, 17
    FB = [120, 140]
    aK, aV, aQ, aF = 192, 208, 224, 240
    STf, CSf = 96, 102
    WF, ON = 20, 28
    AD = 34
    w2 = W2((75, 76, 77, 78, 79))
    ws = W2Stream(w2)
    a.label('L_A')
    a.forget()
    I('v_lshrrev_b32 v12, 3, v%d' % vL)
    I('s_lshl_b32 %s, %s, 7' % (sA, sT))
    I('s_lshl_b32 %s, %s, 4' % (sB, sW))
    I('s_add_u32 %s, %s, %s' % (sA, sA, sB))
    I('v_add_u32 v13, %s, v12' % sA)
    I('v_mul_u32_u24 v13, 896, v13')
    I('v_lshrrev_b32 v14, 4, v%d' % vL)
    I('v_and_b32 v15, 7, v%d' % vL)
    I('v_xor_b32 v6, v14, v15')
    I('v_lshl_add_u32 v%d, v6, 4, v13' % vX0)
    I('v_xor_b32 v6, 4, v6')
    I('v_lshl_add_u32 v%d, v6, 4, v13' % vX1)
    I('v_add_u32 v%d, %d, v%d' % (vX1, 8 * 896 - 1024, vX1))
    I('s_lshl_b32 %s, %s, 3' % (sA, sW))
    I('v_add_u32 v13, %s, v12' % sA)
    I('v_mul_u32_u24 v13, 2688, v13')
    I('v_and_b32 v14, 1, v14')
    I('v_lshlrev_b32 v14, 2, v14')
    I('v_xor_b32 v14, v14, v15')
    I('v_lshl_add_u32 v13, v14, 4, v13')
    I('s_lshl_b32 %s, %s, 1' % (sA, sG))
    I('s_add_u32 %s, %s, %s' % (sA, sA, sTY))
    I('s_sub_u32 %s, %s, 2' % (sKO, sA))
    I('s_mul_i32 %s, %s, 112' % (sA, sKO))
    I('v_add_u32 v13, %s, v13' % sA)
    I('v_mov_b32 v12, 0x%x' % BIG)
    I('v_cmp_eq_u32 vcc, 7, v14')
    I('v_cndmask_b32 v%d, v13, v12, vcc' % vQo)
    I('s_lshr_b32 %s, %s, 2' % (sA, sW))
    I('s_lshl_b32 %s, %s, 1' % (sA, sA))
    I('s_and_b32 %s, %s, 1' % (sB, sW))
    I('s_add_u32 %s, %s, %s' % (sA, sA, sB))
    I('s_and_b32 %s, %s, 2' % (sB, sW))
    I('s_lshl_b32 %s, %s, 1' % (sC, sB))
    I('s_add_u32 %s, %s, %s' % (sC, sC, sA))
    I('s_lshl_b32 %s, %s, 10' % (sH2, sC))
    I('s_lshl_b32 %s, %s, 4' % (sA, sA))
    I('v_lshrrev_b32 v12, 2, v%d' % vL)
    I('v_add_u32 v12, %s, v12' % sA)
    I('v_mul_u32_u24 v12, 3584, v12')
    I('v_and_b32 v13, 3, v%d' % vL)
    I('v_xor_b32 v13, %s, v13' % sB)
    I('v_lshl_add_u32 v12, v13, 4, v12')
    I('s_mul_i32 %s, %s, 896' % (sA, sG))
    I('s_lshl_b32 %s, %s, 6' % (sB, sTY))
    I('s_add_u32 %s, %s, %s' % (sA, sA, sB))
    I('s_add_u32 %s, %s, %d' % (sA, sA, 768 - 128))
    I('v_add_u32 v%d, %s, v12' % (vGo, sA))
    I('s_lshr_b32 %s, %s, 2' % (sA, sD))
    I('s_mul_i32 %s, %s, 896' % (sA, sA))
    I('s_mul_i32 %s, %s, 224' % (sB, sG))
    I('s_add_u32 %s, %s, %s' % (sA, sA, sB))
    I('s_and_b32 %s, %s, 3' % (sB, sD))
    I('s_cmp_eq_u32 %s, 3' % sB)
    I('s_cselect_b32 %s, 16, 32' % sKF)
    I('s_lshl_b32 %s, %s, 6' % (sB, sB))
    I('s_add_u32 %s, %s, %s' % (sA, sA, sB))
    I('s_lshl_b32 %s, %s, 2' % (sKA, sA))
    I('s_add_u32 %s, %s, 0x%x' % (sKA, sKA, WS_CS + 3584 * 8))
    I('s_cmp_lt_u32 %s, 12' % sD)
    I('s_cselect_b32 s%d, %d, 0' % (rST + 2, 448 * 2688))
    I('s_cselect_b32 %s, %s, 0' % (sKF, sKF))

    def slot(s):
        return (s % 3) * SL

    def dmas(s):
        sl = slot(s)

        def x0():
            I('s_lshl_b32 %s, %s, 1' % (sD, sMB))
            I('s_add_u32 m0, %s, %d' % (sD, sl))
            I('s_mov_b32 %s, %d' % (sD, 128 * s))
            I('buffer_load_dwordx4 v%d, %s, %s offen lds' % (vX0, srd(rX), sD), tag=('st', s))

        def x1():
            I('buffer_load_dwordx4 v%d, %s, %s offen offset:1024 lds' % (vX1, srd(rX), sD), tag=('st', s))
            I('s_mov_b32 %s, %d' % (sE, 64 * 2688 * s))

        def q(area, io):
            def f():
                I('s_add_u32 m0, %s, %d' % (sMB, sl + area - io))
                I('buffer_load_dwordx4 v%d, %s, %s offen offset:%d lds' % (vQo, srd(rQKV), sE, io), tag=('st', s))
            return f

        def gu():
            I('s_add_u32 m0, %s, %d' % (sH2, sl + 40960))
            I('s_mov_b32 %s, %d' % (sD, 64 * 3584 * s))
            I('buffer_load_dwordx4 v%d, %s, %s offen lds' % (vGo, srd(rGU), sD), tag=('st', s))
        return [x0, x1, q(16384, 896), q(24576, 1792), q(32768, 0), gu]

    early_offsets(2688)
    a.raw('    s_waitcnt lgkmcnt(0)')
    for d in dmas(0):
        d()
    early_issue(2688)
    I('s_add_u32 m0, %s, %d' % (sMB, WPH))
    I('s_mul_i32 %s, %s, 3136' % (sA, sKO))
    I('s_add_u32 %s, %s, %s' % (sA, sA, sMB))
    I('buffer_load_dwordx4 v%d, %s, %s offen lds' % (vHo, srd(rPHI), sA), tag=('st', 1))
    for d in dmas(1):
        d()
    stamp(1)
    zero_init()
    hh, r3, c, gp = 12, 13, 14, 15
    lane_fields(hh, r3, c, gp)
    I('v_bfe_u32 v6, v%d, 1, 3' % vL)
    I('v_xor_b32 v6, v6, v%d' % hh)
    I('v_lshlrev_b32 v6, 4, v6')
    I('v_and_b32 v7, 31, v%d' % vL)
    I('v_lshl_add_u32 v6, v7, 7, v6')
    I('s_and_b32 %s, %s, 3' % (sA, sW))
    I('s_lshl_b32 %s, %s, 12' % (sB, sA))
    I('v_add_u32 v6, %s, v6' % sB)
    for k in range(1, 4):
        I('v_xor_b32 v%d, %d, v6' % (6 + k, 32 * k))
    I('s_lshr_b32 %s, %s, 2' % (sB, sW))
    I('v_lshl_add_u32 v18, v%d, 3, v%d' % (hh, r3))
    I('v_lshlrev_b32 v19, 3, v%d' % c)
    I('v_lshl_add_u32 v%d, v18, 6, v19' % vRG)
    I('v_lshl_add_u32 v%d, v%d, 12, v%d' % (vRG, gp, vRG))
    I('v_xor_b32 v%d, %s, v%d' % (vRQ, sB, gp))
    I('v_lshl_add_u32 v%d, v%d, 5, v%d' % (vRG, vRQ, vRG))
    I('v_lshl_add_u32 v19, v%d, 5, v19' % gp)
    I('v_lshrrev_b32 v%d, 1, v%d' % (vRQ, r3))
    I('v_lshl_add_u32 v19, v%d, 6, v19' % vRQ)
    I('s_mul_i32 %s, %s, 56' % (sC, sB))
    I('v_add_u32 v19, %s, v19' % sC)
    I('v_and_b32 v19, 127, v19')
    I('v_lshl_add_u32 v%d, v18, 7, v19' % vRQ)
    I('v_lshl_add_u32 v18, v%d, 2, v%d' % (hh, r3))
    I('v_mul_u32_u24 v18, 56, v18')
    I('v_lshl_add_u32 v18, v%d, 3, v18' % c)
    I('v_lshl_add_u32 v18, v%d, 5, v18' % gp)
    I('s_mul_i32 %s, %s, 1568' % (sC, sB))
    I('s_add_u32 %s, %s, %d' % (sC, sC, WPH))
    I('v_add_u32 v18, %s, v18' % sC)
    I('s_lshl_b32 %s, %s, 2' % (sC, sT))
    I('s_add_u32 %s, %s, %s' % (sC, sC, sA))
    I('s_mul_i32 %s, %s, %d' % (sHB, sC, 144 * 1024))
    early_fill()

    def reads(ks, b):
        f = FB[b]
        x = 'ds_read_b128 %s, v%d' % (vr(f, 4), vRX[ks])
        t = [['ds_read_b64_tr_b16 %s, v%d offset:%d' % (vr(f + 4 + 4 * n + 2 * sc, 2), vRQ, 16384 + 8192 * n + 2048 * ks + 512 * sc)
              for sc in range(2)] for n in range(3)]
        t.append(['ds_read_b64_tr_b16 %s, v%d offset:%d' % (vr(f + 16 + 2 * sc, 2), vRG, 40960 + 1024 * ks + 256 * sc)
                  for sc in range(2)])
        return [[x] + t[0] + t[1][:1], t[1][1:] + t[2], t[3], []]

    def mf(b, first=False):
        f = FB[b]
        return [mfma(aK + 16 * n, f + 4 + 4 * n, f, '0' if first else None) for n in range(4)]

    def adv(s):
        d = slot(s + 1) - slot(s)
        return ['v_add_u32 v%d, %d, v%d' % (r, d, r) for r in vRX + [vRQ, vRG]]

    def wphi_load():
        for q in range(4):
            I('ds_read_b64_tr_b16 %s, v18 offset:%d' % (vr(WF + 2 * q, 2), 448 * q))
        for k in range(6):
            fill.add('v_mov_b32 v%d, 0x3f803f80' % (ON + k))
        fill.add(['s_mov_b32 exec_lo, 0'] + ['v_mov_b32 v%d, 0' % r for r in (WF + 6, WF + 7, ON + 4, ON + 5)]
                 + ['s_mov_b32 exec_lo, 0xf0000000', 's_mov_b32 exec_hi, 0xf0000000']
                 + ['v_mov_b32 v%d, 0' % (WF + k) for k in range(8)] + ['s_mov_b64 exec, -1'])
        fill.add('v_and_b32 v72, 31, v%d' % vL, 's_and_b32 %s, %s, 3' % (sA, sW), 's_lshl_b32 %s, %s, 5' % (sA, sA),
                 'v_lshrrev_b32 v73, 2, v72', 'v_add_u32 v72, %s, v72' % sA, 'v_mul_u32_u24 v72, 320, v72',
                 'v_lshrrev_b32 v74, 5, v%d' % vL, 'v_xor_b32 v73, v73, v74',
                 's_lshr_b32 %s, %s, 2' % (sA, sW), 's_mul_i32 %s, %s, 40960' % (sA, sA),
                 's_add_u32 %s, %s, %d' % (sA, sA, SL), 'v_lshl_add_u32 v72, v73, 3, v72',
                 'v_add_u32 v%d, %s, v72' % (AD, sA))
        for j in range(1, 4):
            fill.add('v_xor_b32 v%d, %d, v%d' % (AD + j, 16 * j, AD))

    def stcs_loads():
        t0, t1 = 72, 73
        I('v_and_b32 v%d, 31, v%d' % (t0, vL))
        I('v_lshlrev_b32 v%d, 4, v%d' % (t1, t0))
        I('s_lshl_b32 %s, %s, 2' % (sA, sT))
        I('s_and_b32 %s, %s, 3' % (sB, sW))
        I('s_add_u32 %s, %s, %s' % (sA, sA, sB))
        I('s_lshl_b32 %s, %s, 9' % (sA, sA))
        I('s_add_u32 %s, %s, 0x%x' % (sA, sA, WS_ST))
        I('buffer_load_dwordx4 %s, v%d, %s, %s offen sc1' % (vr(STf, 4), t1, srd(rWS), sA))
        I('v_lshlrev_b32 v%d, 3, v%d' % (t1, vL))
        I('v_mov_b32 v%d, 0x%x' % (t0, BIG))
        I('v_cmp_gt_u32 vcc, 28, v%d' % vL)
        I('v_cndmask_b32 v%d, v%d, v%d, vcc' % (t1, t0, t1))
        I('s_lshr_b32 %s, %s, 2' % (sB, sW))
        I('s_lshl_b32 %s, %s, 1' % (sA, sKO))
        I('s_add_u32 %s, %s, %s' % (sA, sA, sB))
        I('s_mul_i32 %s, %s, 224' % (sA, sA))
        I('s_add_u32 %s, %s, 0x%x' % (sA, sA, WS_CS + 3584 * 8))
        I('s_add_u32 %s, %s, %d' % (sC, sA, 3584))
        I('buffer_load_dwordx2 %s, v%d, %s, %s offen sc1' % (vr(CSf, 2), t1, srd(rWS), sC))
        I('buffer_load_dwordx2 %s, v%d, %s, %s offen offset:3584 sc1' % (vr(CSf + 4, 2), t1, srd(rWS), sC))
        I('buffer_load_dwordx2 %s, v%d, %s, %s offen sc1' % (vr(CSf + 8, 2), t1, srd(rWS), sA))
        I('v_and_b32 v%d, 15, v%d' % (t1, vL))
        I('v_lshlrev_b32 v%d, 3, v%d' % (t1, t1))
        I('v_lshrrev_b32 v%d, 4, v%d' % (t0, vL))
        I('v_mul_u32_u24 v%d, %d, v%d' % (vDB, 1792 * 8, t0))
        I('v_add_u32 v%d, v%d, v%d' % (t1, t1, vDB))
        I('v_lshrrev_b32 v%d, 1, v%d' % (t0, t0))
        I('v_lshl_add_u32 v%d, v%d, 30, v%d' % (t1, t0, t1))
        I('s_mul_i32 %s, %s, 28' % (sA, sG))
        I('s_lshl_b32 %s, %s, 1' % (sC, sTY))
        I('s_add_u32 %s, %s, %s' % (sA, sA, sC))
        I('s_add_u32 %s, %s, %s' % (sA, sA, sB))
        I('s_add_u32 %s, %s, 20' % (sA, sA))
        I('s_lshl_b32 s%d, %s, 10' % (rPHI, sA))
        I('s_add_u32 s%d, s%d, %s' % (rPHI, rPHI, sHB))
        I('s_mov_b32 s%d, %s' % (rPHI + 1, sKO))
        I('s_lshl_b32 %s, %s, 7' % (sA, sA))
        I('s_add_u32 %s, %s, 0x%x' % (sA, sA, WS_CS))
        I('buffer_load_dwordx2 %s, v%d, %s, %s offen sc1' % (vr(CSf + 12, 2), t1, srd(rWS), sA))
        for r in [STf + 4, STf + 5] + [CSf + 4 * u + k for u in range(4) for k in (2, 3)]:
            fill.add('v_mov_b32 v%d, 0' % r)
    sHo, sPair = 's%d' % rPHI, 's%d' % (rPHI + 1)

    for s in range(7):
        if s == 1:
            fill.flush()
        a.wait_tag(('st', s), lg=0)
        I('s_barrier')
        if s in (0, 1, 2, 4, 6):
            stamp({0: 2, 1: 3, 2: 4, 4: 5, 6: 6}[s])
        d = dmas(s + 2) if s + 2 < 7 else [None] * 6
        for p in range(4):
            side = reads(p, p & 1)
            if p < 3:
                side[2].append(d[2 * p])
                side[3].append(d[2 * p + 1])
            elif s < 6:
                side[3] += adv(s)
            side = [[x for x in g if x] for g in side]
            if s == 1 and p == 0:
                side[3].append(lambda: early_publish(sKA, sKF))
            if s == 1 and p == 1:
                side[3].append(late_setup)
            if s == 1 and p == 2:
                side[3].append(wphi_load)
            if s == 1 and p == 3:
                side[3].append(early_byte)
            if 2 <= s < 6 and p in (1, 3):
                w = 2 * (s - 2) + (p >> 1)
                side[3].append(prefetch((w, w + 1)))
            if s == OPT['achk'] - 1 and p == 3:
                side[3].append(dbg_issue)
            if s == OPT['achk'] and p == 1:
                side[3] += [fill.flush, dbg_check, stcs_loads]
            if s == 5 and p == 2:
                fill.add(*w2.setup(72, 73, 74))
            if s == 6 and p == 1:
                side[3].append(fill.flush)
                ws.give(131072)
            if s == 6 and p >= 2:
                side[3].append(lambda: ws.issue(1))
            if s == 0 and p == 0:
                for g in side:
                    for x in g:
                        x() if callable(x) else I(x)
                fill.pop(24)
            else:
                block(mf(1 - (p & 1), s == 0 and p == 1), side, 7 if s == 0 else None)
    stamp(7)
    block(mf(1), [])
    P, En, SP, SN = 120, 136, 160, 176
    KB, EP, EN = 40, 48, 56
    PQ = 80
    vC = 38
    for n in range(4):
        I(mfma(aK + 16 * n, CSf + 4 * n, STf + 2))
    I('v_mul_f32 v%d, %s, v%d' % (vC, f32(LOG2E), STf))
    I('s_mov_b32 %s, %s' % (sCnt, f32(60.0)))
    for i in range(0, 16, 2):
        I('v_pk_mul_f32 %s, %s, %s op_sel_hi:[1,0]' % (vr(aK + i, 2), vr(aK + i, 2), vr(vC, 2)))
    pack8(KB, aK)
    I(mfma(P, WF, KB, '0'))
    I(mfma(P, WF + 4, KB + 4))
    ffn_tile(aF, STf + 1, 64, sHo, 0)
    exps(P, En, 'XK')
    pack8(EP, P)
    I(mfma(SP, ON, EP, '0'))
    I(mfma(SP, ON + 2, EP + 4))
    pack8(EN, En)
    I(mfma(SN, ON, EN, '0'))
    I(mfma(SN, ON + 2, EN + 4))
    for j in range(4):
        I('ds_write_b64 v%d, %s' % (AD + j, vr(EP + 2 * j, 2)))
        I('ds_write_b64 v%d, %s offset:64' % (AD + j, vr(EN + 2 * j, 2)))
    for i in range(0, 16, 2):
        I('v_pk_mul_f32 %s, %s, %s op_sel_hi:[1,0]' % (vr(aQ + i, 2), vr(aQ + i, 2), vr(vC, 2)))
    pack8(KB, aQ)
    I('v_rcp_f32 v68, v%d' % SP)
    I('v_rcp_f32 v70, v%d' % SN)
    I(mfma(PQ, WF, KB, '0'))
    I(mfma(PQ, WF + 4, KB + 4))
    I('v_mul_f32 v69, v68, v%d' % STf)
    I('v_mul_f32 v71, v70, v%d' % STf)
    for S_, sc, PKd, off in ((SP, 68, P, 128), (SN, 70, P + 8, 192)):
        for i in range(0, 16, 2):
            I('v_pk_mul_f32 %s, %s, %s op_sel:[0,1] op_sel_hi:[1,1]' % (vr(S_ + i, 2), vr(aV + i, 2), vr(sc, 2)))
        pack8(PKd, S_)
        I('s_mov_b32 exec_lo, 0')
        I('v_cvt_pk_bf16_f32 v%d, v%d, 0' % (PKd + 6, sc))
        I('v_mov_b32 v%d, 0' % (PKd + 7))
        I('s_mov_b32 exec_lo, -1')
        for j in range(4):
            I('ds_write_b64 v%d, %s offset:%d' % (AD + j, vr(PKd + 2 * j, 2), off))
    hh, r3, c, gp = 12, 13, 14, 15
    lane_fields(hh, r3, c, gp)
    I('v_lshl_add_u32 v64, v%d, 3, v%d' % (hh, r3))
    I('v_mul_u32_u24 v64, 320, v64')
    I('v_lshl_add_u32 v65, v%d, 2, v%d' % (gp, c))
    I('v_lshlrev_b32 v66, 1, v%d' % hh)
    I('v_xor_b32 v65, v65, v66')
    I('v_lshl_add_u32 v64, v65, 3, v64')
    I('s_lshr_b32 %s, %s, 1' % (sA, sW))
    I('s_mul_i32 %s, %s, 40960' % (sA, sA))
    I('s_and_b32 %s, %s, 1' % (sB, sW))
    I('s_lshl_b32 %s, %s, 6' % (sB, sB))
    I('s_add_u32 %s, %s, %s' % (sA, sA, sB))
    I('s_add_u32 %s, %s, %d' % (sA, sA, SL))
    I('v_add_u32 v64, %s, v64' % sA)
    I('v_xor_b32 v65, 8, v64')
    I('v_add_u32 v65, %d, v65' % (4 * 320))
    I('v_xor_b32 v66, 32, v64')
    I('v_xor_b32 v67, 32, v65')
    a.wait(lg=0)
    I('s_barrier')
    stamp(8)
    ws.give(0)
    ws.issue()
    I('s_cmp_ge_u32 %s, 4' % sW)
    with a.skip_if('s_cbranch_scc1'):
        FR, KVA = 120, aK
        for i in range(8):
            f = FR + 8 * i
            ad = 64 + 2 * (i & 1)
            for sc in range(2):
                I('ds_read_b64_tr_b16 %s, v%d offset:%d' % (vr(f + 2 * sc, 2), ad + sc, 5120 * i))
            for sc in range(2):
                I('ds_read_b64_tr_b16 %s, v%d offset:%d' % (vr(f + 4 + 2 * sc, 2), ad + sc, 5120 * i + 128))
            if i >= 2:
                k = i - 2
                I(mfma(KVA + 16 * (k & 1), FR + 8 * k, FR + 8 * k + 4, '0' if k < 2 else None))
        for k in (6, 7):
            I(mfma(KVA + 16 * (k & 1), FR + 8 * k, FR + 8 * k + 4))
        I('s_lshl_b32 %s, %s, 2' % (sA, sPair))
        I('s_add_u32 %s, %s, %s' % (sA, sA, sW))
        I('s_lshl_b32 %s, %s, 12' % (sA, sA))
        I('s_add_u32 %s, %s, 0x%x' % (sA, sA, WS_KV))
        I('v_lshlrev_b32 v64, 2, v%d' % vL)
        for i in range(0, 16, 2):
            I('v_pk_add_f32 %s, %s, %s' % (vr(KVA + i, 2), vr(KVA + i, 2), vr(KVA + 16 + i, 2)))
        for r in range(16):
            if r == 12:
                I('s_mov_b32 exec_hi, 0')
            I('buffer_atomic_add_f32 v%d, v64, %s, %s offen offset:%d sc1' % (KVA + r, srd(rWS), sA, 256 * r), tag='kv')
        I('s_mov_b32 exec_hi, -1')
    stamp(9)
    exps(PQ, En, 'XQ')
    pack8(aQ, PQ)
    pack8(aQ + 8, En)
    for d, s_ in zip((vW0, vW1, vW1m, vR2a, vR2b), (w2.vW0, w2.vW1, w2.vW1m, w2.vRa, w2.vRb)):
        I('v_mov_b32 v%d, v%d' % (d, s_))
    w2.vW0, w2.vW1, w2.vW1m, w2.vRa, w2.vRb = vW0, vW1, vW1m, vR2a, vR2b
    a.wait_tag('h')
    flag_store(1)
    ws.step()
    ws.step()
    I('s_cmp_ge_u32 %s, 4' % sW)
    with a.skip_if('s_cbranch_scc1'):
        a.wait_tag('kv')
        flag_store(1, 32)
    stamp(10)
    vKP, vKV = 12 + 228, 13 + 228
    I('v_and_b32 v%d, 15, v%d' % (vKP, vL))
    I('v_lshlrev_b32 v%d, 11, v%d' % (vKP, vKP))
    I('s_and_b32 %s, %s, 15' % (sA, sSX))
    I('s_lshl_b32 %s, %s, 7' % (sA, sA))
    I('s_lshr_b32 %s, %s, 1' % (sB, sW))
    I('s_lshl_b32 %s, %s, 2' % (sB, sB))
    I('s_add_u32 %s, %s, %s' % (sA, sA, sB))
    I('s_add_u32 %s, %s, 0x%x' % (sA, sA, WS_FL + 32))
    I('v_add_u32 v%d, %s, v%d' % (vKP, sA, vKP))

    def kv_issue():
        I('buffer_load_dword v%d, v%d, %s, 0 offen sc1' % (vKV, vKP, srd(rWS)))

    def kv_test():
        I('v_cmp_ne_u32 vcc, 0, v%d' % vKV)
        I('s_cmp_eq_u64 vcc, -1')
    while ws.nr < OPT['kvpos'] - 1:
        ws.step()
    kv_issue()
    ws.step()
    spin_check(kv_issue, kv_test)
    stamp(11)
    KVL = 32768
    I('s_lshl_b32 %s, %s, 1' % (sA, sMB))
    I('s_add_u32 m0, %s, %d' % (sA, KVL))
    I('s_lshl_b32 %s, %s, 14' % (sB, sPair))
    I('s_add_u32 %s, %s, %s' % (sA, sA, sB))
    I('s_add_u32 %s, %s, 0x%x' % (sA, sA, WS_KV))
    for q in range(2):
        I('buffer_load_dwordx4 v%d, %s, %s offen offset:%d sc1 lds' % (vHo, srd(rWS), sA, 1024 * q), tag='kvl')
    ws.step()
    ws.step()
    KR, KF, OP, ON_ = 160, 240, 192, 208
    I('s_lshr_b32 %s, %s, 2' % (sA, sW))
    I('s_lshl_b32 %s, %s, 13' % (sB, sA))
    I('s_add_u32 %s, %s, %d' % (sB, sB, KVL))
    I('v_lshl_add_u32 v12, v%d, 2, %s' % (vL, sB))
    I('s_lshl_b32 %s, %s, 1' % (sB, sPair))
    I('s_add_u32 %s, %s, %s' % (sA, sA, sB))
    I('s_lshl_b32 %s, %s, 11' % (sA, sA))
    I('s_add_u32 %s, %s, %s' % (sA, sA, sHB))
    I('s_add_u32 %s, %s, %d' % (sHo, sA, 112 * 1024))
    a.wait_tag('kvl', lg=0)
    I('s_barrier')
    stamp(12)
    ws.give(65536, 98304)
    for r in range(0, 32, 2):
        I('ds_read2st64_b32 %s, v12 offset0:%d offset1:%d' % (vr(KR + r, 2), r, r + 1))
    for q in range(4):
        for i in range(4 * q, 4 * q + 4):
            I('v_cvt_pk_bf16_f32 v%d, v%d, v%d' % (KF + i, KR + 2 * i, KR + 2 * i + 1))
        I(mfma(OP + 16 * (q >> 1), KF + 4 * q, aQ + 4 * q, None if q & 1 else '0'))
    ws.issue(2)
    t = KR
    I('v_rcp_f32 v%d, v%d' % (t, OP + 13))
    I('v_rcp_f32 v%d, v%d' % (t + 1, ON_ + 13))
    I('v_mul_f32 v%d, v%d, v%d' % (t + 2, OP + 12, t))
    I('v_fma_f32 v%d, v%d, v%d, v%d' % (t + 2, ON_ + 12, t + 1, t + 2))
    I('v_add_f32 v%d, %s, v%d' % (t + 2, f32(1e-6), t + 2))
    I('v_rcp_f32 v%d, v%d' % (t + 2, t + 2))
    I('v_mul_f32 v%d, v%d, v%d' % (t, t, t + 2))
    I('v_mul_f32 v%d, v%d, v%d' % (t + 1, t + 1, t + 2))
    I('v_mov_b32 v%d, v%d' % (t + 2, t))
    I('v_mov_b32 v%d, v%d' % (t + 3, t + 1))
    I('v_permlane32_swap_b32 v%d, v%d' % (t + 2, t))
    I('v_permlane32_swap_b32 v%d, v%d' % (t + 3, t + 1))
    for i in range(0, 16, 2):
        I('v_pk_mul_f32 %s, %s, %s op_sel_hi:[1,0]' % (vr(OP + i, 2), vr(OP + i, 2), vr(t, 2)))
    for i in range(0, 16, 2):
        I('v_pk_fma_f32 %s, %s, %s, %s op_sel:[0,1,0] op_sel_hi:[1,1,1]' % (vr(OP + i, 2), vr(ON_ + i, 2), vr(t, 2), vr(OP + i, 2)))
    pack8(KR + 8, OP)
    for q in range(2):
        I('buffer_store_dwordx4 %s, v%d, %s, %s offen offset:%d sc1' % (vr(KR + 8 + 4 * q, 4), vHo, srd(rWS), sHo, 1024 * q), tag='o')
    stamp(13)
    ws.step()
    ws.step()
    a.wait_tag('o')
    flag_store(2)
    stamp(14)
    I('s_cmp_lt_u32 s2, 224')
    with a.skip_if('s_cbranch_scc1'):
        a.raw('    s_waitcnt vmcnt(0) lgkmcnt(0)')
        I('s_branch L_FIN')
    p2_setup()
    while ws.nr < 18:
        ws.step()
    a.wait(lg=0)
    stamp(15)


vOo, vXR, vPv = 11, 12, 16 - 16


def p2_setup():
    t0, t1 = HB, HB + 1
    I('s_and_b32 %s, %s, 7' % (sC, sH2))
    I('s_lshr_b32 %s, %s, 3' % (sB, sH2))
    I('s_mul_i32 %s, %s, %d' % (sH2, sB, 2 * 144 * 1024))
    I('s_and_b32 %s, %s, 1' % (sA, sW))
    I('s_mul_i32 %s, %s, %d' % (sD, sA, 144 * 1024))
    I('v_add_u32 v%d, %s, v%d' % (vH0, sD, vHo))
    I('s_xor_b32 %s, %s, %d' % (sD, sD, 144 * 1024))
    I('v_add_u32 v%d, %s, v%d' % (vH1, sD, vHo))
    I('s_lshl_b32 %s, %s, 1' % (sD, sB))
    I('s_add_u32 %s, %s, %s' % (sD, sD, sA))
    I('s_lshl_b32 %s, %s, 5' % (sD, sD))
    I('v_and_b32 v%d, 31, v%d' % (t0, vL))
    I('v_add_u32 v%d, %s, v%d' % (t0, sD, t0))
    I('v_mul_u32_u24 v%d, 896, v%d' % (t0, t0))
    I('v_lshrrev_b32 v%d, 5, v%d' % (t1, vL))
    I('v_lshl_add_u32 v%d, v%d, 4, v%d' % (t0, t1, t0))
    I('s_lshl_b32 %s, %s, 7' % (sC, sC))
    I('s_bfe_u32 %s, %s, 0x10001' % (sD, sW))
    I('s_lshl_b32 %s, %s, 6' % (sD, sD))
    I('s_add_u32 %s, %s, %s' % (sC, sC, sD))
    I('s_lshr_b32 %s, %s, 2' % (sD, sW))
    I('s_lshl_b32 %s, %s, 5' % (sD, sD))
    I('s_add_u32 %s, %s, %s' % (sC, sC, sD))
    I('v_add_u32 v%d, %s, v%d' % (vOo, sC, t0))
    I('buffer_load_dwordx4 %s, v%d, %s, 0 offen' % (vr(vXR, 4), vOo, srd(rX)))
    I('s_lshr_b32 %s, %s, 1' % (sC, sB))
    I('s_and_b32 %s, %s, 1' % (sB, sB))
    I('s_lshl_b32 %s, %s, 4' % (sC, sC))
    I('s_lshr_b32 %s, %s, 1' % (sD, sW))
    I('s_lshl_b32 %s, %s, 2' % (sD, sD))
    I('s_add_u32 %s, %s, %s' % (sC, sC, sD))
    I('s_add_u32 %s, %s, %s' % (sC, sC, sA))
    I('s_lshl_b32 %s, %s, 7' % (sC, sC))
    I('s_add_u32 %s, %s, 0x%x' % (sC, sC, WS_FL))
    I('s_lshl_b32 %s, %s, 2' % (sB, sB))
    I('s_add_u32 %s, %s, %s' % (sC, sC, sB))
    I('v_and_b32 v%d, 3, v%d' % (t0, vL))
    I('v_lshl_add_u32 v%d, v%d, 3, %s' % (vPo, t0, sC))
    I('s_add_u32 %s, %s, %s' % (sC, sC, sB))
    I('s_add_u32 %s, %s, 256' % (sC, sC))
    I('v_and_b32 v%d, 1, v%d' % (t0, vL))
    I('v_bfe_u32 v%d, v%d, 1, 1' % (t1, vL))
    I('v_lshlrev_b32 v%d, 2, v%d' % (t0, t0))
    I('v_lshl_add_u32 v%d, v%d, 4, v%d' % (t0, t1, t0))
    I('v_add_u32 v%d, %s, v%d' % (t0, sC, t0))
    I('v_cmp_gt_u32 vcc, 4, v%d' % vL)
    I('v_cndmask_b32 v%d, v%d, v%d, vcc' % (vPo, t0, vPo))


def h_stream():
    a.label('L_H')
    a.forget()

    def issue():
        I('buffer_load_dword v%d, v%d, %s, 0 offen sc1' % (vPv, vPo, srd(rWS)))

    def need(mask, val):
        def test():
            I('v_cmp_le_u32 vcc, %d, v%d' % (val, vPv))
            I('s_and_b32 %s, vcc_lo, 0x%x' % (sA, mask))
            I('s_cmp_eq_u32 %s, 0x%x' % (sA, mask))
        spin_check(issue, test)

    def load(i):
        kind, j = W2.kinfo(i)
        if j % 4 == 0:
            if kind == 'O':
                I('s_lshl_b32 %s, %s, 12' % (sE, sW))
                I('s_add_u32 %s, %s, %d' % (sE, sE, 112 * 1024))
            else:
                I('s_add_u32 %s, %s, %d' % (sE, sKF if kind == 'F' else sKA, j))
                I('s_lshl_b32 %s, %s, 10' % (sE, sE))
            I('s_add_u32 %s, %s, %s' % (sE, sE, sH2))
        for tt, v in enumerate((vH0, vH1)):
            I('buffer_load_dwordx4 %s, v%d, %s, %s offen offset:%d sc1'
              % (vr(HB + 8 * (i % 4) + 4 * tt, 4), v, srd(rWS), sE, 1024 * (j % 4)))

    gates = {0: (0xf0, 1), 2: (0x0f, 1), 14: (0xf0, 2)}
    issue()

    def gated_load(i):
        if i in gates:
            need(*gates[i])
            if i == 2:
                stamp(16)
            if i == 14:
                stamp(17)
        load(i)
        if i == 11:
            issue()
    for i in range(4):
        gated_load(i)
    for i in range(18):
        for tt in range(2):
            for nn in range(2):
                I(mfma(A2 + 16 * (2 * nn + tt), W2F + 8 * i + 4 * nn, HB + 8 * (i % 4) + 4 * tt, '0' if i == 0 else None))
        if i + 4 < 18:
            gated_load(i + 4)
    stamp(18)
    piece = [0, 65536, 98304, 131072]
    I('s_lshl_b32 %s, %s, 2' % (sA, sMB))
    I('v_add_u32 v2, %s, v%d' % (sA, vHo))
    I('v_add_u32 v3, 65536, v2')
    I('v_add_u32 v4, 131072, v2')

    def areg(q, base):
        p = piece[q >> 1]
        return base + (p >> 16), (p & 0xffff) + 2048 * (q & 1)
    for q in range(1, 8):
        v, o = areg(q, 2)
        r = A2 + 16 * (q & 3) + 8 * (q >> 2)
        I('ds_write_b128 v%d, %s offset:%d' % (v, vr(r, 4), o))
        I('ds_write_b128 v%d, %s offset:%d' % (v, vr(r + 4, 4), o + 1024))
    for q in range(1, 8):
        I('v_xor_b32 v%d, %d, v%d' % (16 + q, 4096 * q, areg(q, 2)[0]))
    X = 32
    for i in range(4):
        I('v_lshlrev_b32 v%d, 16, v%d' % (X + 2 * i, vXR + i))
        I('v_and_b32 v%d, 0xffff0000, v%d' % (X + 2 * i + 1, vXR + i))
    a.wait(lg=0)
    I('s_barrier')
    stamp(19)
    R = 48
    for q in range(1, 8):
        o = areg(q, 2)[1]
        I('ds_read_b128 %s, v%d offset:%d' % (vr(R + 8 * q, 4), 16 + q, o))
        I('ds_read_b128 %s, v%d offset:%d' % (vr(R + 8 * q + 4, 4), 16 + q, o + 1024))
    K = A2
    for q in range(1, 8):
        for i in range(0, 8, 2):
            I('v_pk_add_f32 %s, %s, %s' % (vr(K + i, 2), vr(K + i, 2), vr(R + 8 * q + i, 2)))
    for i in range(4):
        I('v_permlane32_swap_b32 v%d, v%d' % (K + i, K + 4 + i))
    for i in range(0, 8, 2):
        I('v_pk_add_f32 %s, %s, %s' % (vr(K + i, 2), vr(K + i, 2), vr(X + i, 2)))
    for i in range(4):
        I('v_cvt_pk_bf16_f32 v%d, v%d, v%d' % (X + 8 + i, K + 2 * i, K + 2 * i + 1))
    I('buffer_store_dwordx4 %s, v%d, %s, 0 offen' % (vr(X + 8, 4), vOo, srd(rOUT)))
    stamp(20)


def main():
    k1 = NAME + '_kernel'
    out = '; generated by gen/g2.py (hand-designed schedule; see gen/NOTES.md)\n'
    out += '; @launch grid=(256,1,1) block=(512,1,1) lds=163840\n'
    out += '.amdgcn_target "amdgcn-amd-amdhsa--gfx950"\n.text\n'
    a.raw('.globl %s\n.p2align 8\n.type %s,@function\n%s:\n' % (k1, k1, k1))
    prologue()
    path_F()
    path_A()
    h_stream()
    a.label('L_FIN')
    a.forget()
    stamp_flush()
    if OPT['dbgt']:
        a.raw('    s_waitcnt vmcnt(0)')
        I('s_memtime s[92:93]')
        I('s_memrealtime s[94:95]')
        a.raw('    s_waitcnt lgkmcnt(0)')
        I('s_sub_u32 s92, s92, s96')
        I('s_not_b32 s98, s98')
        I('v_mov_b32 v2, s94')
        I('v_writelane_b32 v2, s98, 1')
        I('v_writelane_b32 v2, s92, 2')
        I('v_lshlrev_b32 v3, 2, v%d' % vL)
        I('s_lshl_b32 %s, s2, 3' % sE)
        I('s_add_u32 %s, %s, %s' % (sE, sE, sW))
        I('s_lshl_b32 %s, %s, 8' % (sE, sE))
        I('s_add_u32 %s, %s, 0x%x' % (sE, sE, WS_TM))
        I('buffer_store_dword v2, v3, %s, %s offen' % (srd(rWS), sE))
    a.label('L_END')
    I('s_endpgm')
    for b in slow_blocks:
        emit_slow(*b)
    out += a.text()
    out += '''.section .rodata,"a"
.p2align 6
.amdhsa_kernel %s
  .amdhsa_next_free_vgpr 256
  .amdhsa_next_free_sgpr 102
  .amdhsa_accum_offset 256
  .amdhsa_group_segment_fixed_size 0
  .amdhsa_kernarg_size 88
  .amdhsa_user_sgpr_count 2
  .amdhsa_user_sgpr_kernarg_segment_ptr 1
  .amdhsa_system_sgpr_workgroup_id_x 1
.end_amdhsa_kernel
''' % k1
    open(sys.argv[1], 'w').write(out)


main()
```

```python
import sys
import os
import struct
sys.path.insert(0, os.path.dirname(os.path.abspath(__file__)))
from asmtool import Asm

NAME = 'parallel_sum__linear_kernel_hedgehog__glu_gated_reglu__prompt'
OPT = dict(timing=0, tset=0, dbgt=0, kvpos=10, fchk=11, achk=5, achkp=2, dchk=2, nfill=5, fflag=2, rot=1, fbyte=5, abyte=2, w2p=0, hsc=1, spos=0)
for arg in sys.argv[2:]:
    k, v = arg.split('=')
    OPT[k] = int(v)

WS_KV = 0x1000000
WS_FL = 0x1020000
WS_ST = 0x1028000
WS_CS = 0x1030000
WS_TM = 0x1200000
WS_SIZE = 0x10000000
BIG = 0x40000000
SPIN = 50000
PART = 147456
STL = PART + 1024
DUMMY = PART + 2048
WPH = PART + 4096

sW, sG, sT, sTY, sMB = 's3', 's4', 's5', 's6', 's7'
rX, rGU, rST, rWS, rWD, rWO, rOUT, rDBG, rQKV, rPHI = 8, 12, 16, 20, 24, 28, 32, 36, 40, 44
sA, sB, sC, sD, sE = 's48', 's49', 's50', 's51', 's52'
sHB, sCnt, sKF, sKA, sKO, sH2, sSX = 's53', 's54', 's55', 's56', 's57', 's58', 's59'
STAMP0 = 60

vL, vHo = 1, 10
W2F = 16


def srd(r):
    return 's[%d:%d]' % (r, r + 3)


def vr(b, n=1):
    return 'v[%d:%d]' % (b, b + n - 1) if n > 1 else 'v%d' % b


def f32(x):
    return '0x%08x' % struct.unpack('<I', struct.pack('<f', x))[0]


a = Asm()
I = a.I


def mfma(d, x, y, c=None):
    return 'v_mfma_f32_32x32x16_bf16 %s, %s, %s, %s' % (vr(d, 16), vr(x, 4), vr(y, 4), vr(d, 16) if c is None else c)


nstamp = [0]


def stamp(k, tset=0):
    if OPT['timing'] and (k == 0 or tset == OPT['tset']):
        assert k < 21
        a.raw('    s_mem%stime s[%d:%d]' % ('real' if OPT['timing'] == 2 else '', STAMP0 + 2 * k, STAMP0 + 2 * k + 1))


def stamp_flush():
    if not OPT['timing']:
        return
    a.raw('    s_waitcnt lgkmcnt(0)')
    I('v_mov_b32 v2, 0')
    for k in range(21):
        I('v_writelane_b32 v2, s%d, %d' % (STAMP0 + 2 * k, k))
    I('s_lshl_b32 %s, s2, 3' % sE)
    I('s_add_u32 %s, %s, %s' % (sE, sE, sW))
    I('s_lshl_b32 %s, %s, 8' % (sE, sE))
    I('s_add_u32 %s, %s, 0x%x' % (sE, sE, WS_TM))
    I('v_lshlrev_b32 v3, 2, v%d' % vL)
    I('buffer_store_dword v2, v3, %s, %s offen' % (srd(rWS), sE))


class Fill:
    def __init__(self):
        self.q = []

    def add(self, *items):
        for it in items:
            self.q.append(it)

    def pop(self, n):
        while n > 0 and self.q:
            it = self.q.pop(0)
            if callable(it):
                it()
                n -= 3
            elif isinstance(it, (list, tuple)):
                for s in it:
                    I(s)
                n -= len(it)
            else:
                I(it)
                n -= 1

    def flush(self):
        self.pop(1 << 30)


fill = Fill()


def block(mf, side, nfill=None):
    nfill = OPT['nfill'] if nfill is None else nfill
    for i, m in enumerate(mf):
        I(m)
        for s in (side[i] if i < len(side) else []):
            if callable(s):
                s()
            else:
                I(s)
        fill.pop(nfill)


def spin_check(issue, test, slp=1):
    lp, done = a.newlabel('SPL'), a.newlabel('SPD')
    test()
    I('s_cbranch_scc1 %s' % done)
    I('s_mov_b32 %s, %d' % (sCnt, SPIN))
    a.label(lp)
    a.auto = False
    n = len(a.vm)
    I('s_sleep %d' % slp)
    issue()
    a.raw('    s_waitcnt vmcnt(0)')
    I('s_sub_u32 %s, %s, 1' % (sCnt, sCnt))
    I('s_cbranch_scc1 %s' % done)
    test()
    I('s_cbranch_scc0 %s' % lp)
    del a.vm[n:]
    a.auto = True
    a.label(done)


eD, eX, eA, eT = 16, 96, 100, 108
vSo, vXs = 116, 118


def stats_offsets():
    I('v_mov_b32 v14, 0x%x' % BIG)
    I('s_lshl_b32 %s, %s, 2' % (sB, sG))
    I('s_add_u32 %s, %s, %s' % (sB, sB, sTY))
    I('s_lshl_b32 %s, %s, 4' % (sC, sT))
    I('s_add_u32 %s, %s, %s' % (sSX, sB, sC))
    I('s_lshl_b32 %s, %s, 3' % (sB, sSX))
    I('s_add_u32 %s, %s, %s' % (sB, sB, sW))
    I('s_mul_i32 %s, %s, 896' % (sB, sB))
    I('v_add_u32 v12, %s, v%d' % (sB, vHo))
    I('v_cmp_gt_u32 vcc, 56, v%d' % vL)
    I('v_cndmask_b32 v%d, v14, v12, vcc' % vXs)


def stats_issue():
    I('buffer_load_dwordx4 %s, v%d, %s, 0 offen' % (vr(eX, 4), vXs, srd(rX)))


def stats_compute():
    S1, S2, t0, t1, S3, S4 = eT, eT + 1, eT + 2, eT + 3, eT + 4, eT + 5
    I('v_lshlrev_b32 v%d, 16, v%d' % (S1, eX))
    I('v_and_b32 v%d, 0xffff0000, v%d' % (S3, eX))
    I('v_mul_f32 v%d, v%d, v%d' % (S2, S1, S1))
    I('v_mul_f32 v%d, v%d, v%d' % (S4, S3, S3))
    for d in range(1, 4):
        for x in ('v_lshlrev_b32 v%d, 16, v%d' % (t0, eX + d), 'v_and_b32 v%d, 0xffff0000, v%d' % (t1, eX + d),
                  'v_add_f32 v%d, v%d, v%d' % (S1, S1, t0), 'v_fmac_f32 v%d, v%d, v%d' % (S2, t0, t0),
                  'v_add_f32 v%d, v%d, v%d' % (S3, S3, t1), 'v_fmac_f32 v%d, v%d, v%d' % (S4, t1, t1)):
            I(x)
    I('v_add_f32 v%d, v%d, v%d' % (S1, S1, S3))
    I('v_add_f32 v%d, v%d, v%d' % (S2, S2, S4))
    red = []
    for m in ('row_shr:1', 'row_shr:2', 'row_shr:4', 'row_shr:8'):
        red.append(['v_add_f32_dpp v%d, v%d, v%d %s row_mask:0xf bank_mask:0xf bound_ctrl:0' % (s, s, s, m) for s in (S1, S2)])
    red.append(['v_add_f32_dpp v%d, v%d, v%d row_bcast:15 row_mask:0xa bank_mask:0xf' % (s, s, s) for s in (S1, S2)])
    red.append(['v_add_f32_dpp v%d, v%d, v%d row_bcast:31 row_mask:0xc bank_mask:0xf' % (s, s, s) for s in (S1, S2)])
    R = eX
    red += [['v_mul_f32 v%d, %s, v%d' % (S1, f32(-1.0 / 448), S1), 'v_mul_f32 v%d, %s, v%d' % (S2, f32(1.0 / 448), S2)],
            ['v_fma_f32 v%d, -v%d, v%d, v%d' % (S2, S1, S1, S2), 'v_cvt_pk_bf16_f32 v%d, v%d, v%d' % (t0, S1, S1)],
            ['v_max_f32 v%d, 0, v%d' % (S2, S2), 'v_lshlrev_b32 v%d, 16, v%d' % (t0, t0)],
            ['v_add_f32 v%d, %s, v%d' % (S2, f32(1e-5), S2), 'v_sub_f32 v%d, v%d, v%d' % (t0, S1, t0)],
            ['v_rsq_f32 v%d, v%d' % (R, S2), 'v_cvt_pk_bf16_f32 v%d, v%d, v%d' % (R + 2, S1, t0)],
            ['v_rcp_f32 v%d, v%d' % (R + 1, S2), 'v_mov_b32 v%d, v%d' % (R + 3, R + 2)]]
    for g in red:
        for x in g:
            I(x)


def stats_store():
    I('s_lshl_b32 %s, %s, 3' % (sD, sSX))
    I('s_add_u32 %s, %s, %s' % (sD, sD, sW))
    I('s_lshl_b32 %s, %s, 4' % (sD, sD))
    I('s_add_u32 %s, %s, 0x%x' % (sD, sD, WS_ST - 63 * 16))
    I('s_mov_b32 exec_lo, 0')
    I('s_mov_b32 exec_hi, 0x80000000')
    I('buffer_store_dwordx4 %s, v%d, %s, %s offen sc1' % (vr(eX, 4), vHo, srd(rWS), sD))
    I('s_mov_b64 exec, -1')


def strip_loads(sPitch8):
    def ld(q):
        def f():
            I('s_mul_i32 %s, %s, %d' % (sD, sPitch8, q))
            I('buffer_load_dwordx4 %s, v%d, %s, %s offen' % (vr(eD + 4 * q, 4), vSo, srd(rST), sD))
        return f
    return [ld(q) for q in range(7)]


def strip_fill():
    F = fill.add
    t0, t1, t2, t3 = eT, eT + 1, eT + 2, eT + 3
    for d in range(4):
        F('v_lshlrev_b32 v%d, 16, v%d' % (eA + 2 * d, eD + d), 'v_and_b32 v%d, 0xffff0000, v%d' % (eA + 2 * d + 1, eD + d))
    for q in range(1, 7):
        for d in range(0, 4, 2):
            r = eD + 4 * q + d
            F('v_lshlrev_b32 v%d, 16, v%d' % (t0, r), 'v_and_b32 v%d, 0xffff0000, v%d' % (t1, r),
              'v_lshlrev_b32 v%d, 16, v%d' % (t2, r + 1), 'v_and_b32 v%d, 0xffff0000, v%d' % (t3, r + 1))
            for k in range(4):
                F('v_add_f32 v%d, v%d, v%d' % (eA + 2 * d + k, eA + 2 * d + k, t0 + k))
    for i in range(0, 8, 2):
        F('v_permlane32_swap_b32 v%d, v%d' % (eA + i, eA + i + 1))
    for i in range(0, 8, 2):
        F('v_add_f32 v%d, v%d, v%d' % (eA + i, eA + i, eA + i + 1))
    F('v_and_b32 v%d, 7, v%d' % (t0, vL), 'v_bfe_u32 v%d, v%d, 4, 1' % (t1, vL))
    F('v_permlane16_swap_b32 v%d, v%d' % (eA, eA + 2), 'v_permlane16_swap_b32 v%d, v%d' % (eA + 4, eA + 6))
    F('v_lshlrev_b32 v%d, 5, v%d' % (t0, t0), 'v_lshl_add_u32 v%d, v%d, 3, v%d' % (t0, t1, t0))
    F('v_add_f32 v%d, v%d, v%d' % (eA, eA, eA + 2), 'v_add_f32 v%d, v%d, v%d' % (eA + 4, eA + 4, eA + 6))
    F('v_lshrrev_b32 v%d, 5, v%d' % (t1, vL), 'v_lshl_add_u32 v%d, v%d, 2, v%d' % (t0, t1, t0))
    F(['s_lshl_b32 %s, %s, 8' % (sA, sW), 's_add_u32 %s, %s, %d' % (sA, sA, PART), 'v_add_u32 v%d, %s, v%d' % (t0, sA, t0)])
    F(*['v_add_f32_dpp v%d, v%d, v%d row_shr:8 row_mask:0xf bank_mask:0xf bound_ctrl:0' % (s, s, s) for s in (eA, eA + 4)])
    F(['s_mov_b32 exec_lo, 0xff00ff00', 's_mov_b32 exec_hi, 0xff00ff00',
       'ds_write2_b32 v%d, v%d, v%d offset1:4' % (t0, eA, eA + 4), 's_mov_b64 exec, -1'])


def strip_publish(sCol):
    t = eT
    I('s_cmp_lg_u32 %s, 0' % sW)
    with a.skip_if('s_cbranch_scc1'):
        I('v_lshlrev_b32 v%d, 2, v%d' % (t, vL))
        I('v_add_u32 v%d, %d, v%d' % (t, PART, t))
        for k in range(4):
            I('ds_read2st64_b32 %s, v%d offset0:%d offset1:%d' % (vr(eA + 2 * k, 2), t, 2 * k, 2 * k + 1))
        I('v_lshl_add_u32 v%d, v%d, 3, %s' % (t + 1, vL, sCol))
        for k in range(4):
            I('v_add_f32 v%d, v%d, v%d' % (eA + 2 * k, eA + 2 * k, eA + 2 * k + 1))
        I('v_add_f32 v%d, v%d, v%d' % (eA, eA, eA + 2))
        I('v_add_f32 v%d, v%d, v%d' % (eA + 4, eA + 4, eA + 6))
        I('v_add_f32 v%d, v%d, v%d' % (eA, eA, eA + 4))
        I('v_cvt_pk_bf16_f32 v%d, v%d, v%d' % (eA + 2, eA, eA))
        I('v_lshlrev_b32 v%d, 16, v%d' % (eA + 1, eA + 2))
        I('v_sub_f32 v%d, v%d, v%d' % (eA, eA, eA + 1))
        I('v_cvt_pk_bf16_f32 v%d, v%d, v%d' % (eA + 3, eA, eA))
        I('v_mov_b32 v%d, 0x80008000' % eA)
        I('v_cmp_eq_u32 vcc, 0, v%d' % (eA + 3))
        I('v_cndmask_b32 v%d, v%d, v%d, vcc' % (eA + 3, eA + 3, eA))
        I('buffer_store_dwordx2 %s, v%d, %s, 0 offen sc1' % (vr(eA + 2, 2), t + 1, srd(rWS)))


INITW = 112


def init_cond():
    I('s_lshr_b32 %s, s2, 4' % sA)
    I('s_lshl_b32 %s, %s, 4' % (sB, sW))
    I('s_add_u32 %s, %s, %s' % (sA, sA, sB))
    I('s_cmp_lg_u32 %s, %d' % (sA, INITW >> 4))


def init_stores():
    init_cond()
    with a.skip_if('s_cbranch_scc1'):
        for k in range(4):
            I('v_mov_b32 v%d, 0' % (120 + k))
        I('s_and_b32 %s, s2, 15' % sA)
        I('s_mul_i32 %s, %s, %d' % (sA, sA, 15 * 1024))
        I('s_add_u32 %s, %s, 0x%x' % (sA, sA, WS_KV))
        for k in range(15):
            if k and k % 4 == 0:
                I('s_add_u32 %s, %s, 4096' % (sA, sA))
            I('buffer_store_dwordx4 v[120:123], v%d, %s, %s offen offset:%d sc1' % (vHo, srd(rWS), sA, 1024 * (k % 4)), tag='init')


def init_signal():
    init_cond()
    with a.skip_if('s_cbranch_scc1'):
        a.wait_tag('init')
        I('s_and_b32 %s, s2, 15' % sA)
        I('s_lshl_b32 %s, %s, 2' % (sA, sA))
        I('v_mov_b32 v120, 1')
        I('v_mov_b32 v121, %s' % sA)
        I('s_mov_b64 exec, 1')
        I('buffer_store_dword v120, v121, %s, 0 offen sc1' % srd(rDBG))
        I('s_mov_b64 exec, -1')


vDB = 14


def dbg_load():
    I('v_and_b32 v%d, 15, v%d' % (vDB, vL))
    I('v_lshlrev_b32 v%d, 2, v%d' % (vDB, vDB))
    I('buffer_load_dword v%d, v%d, %s, 0 offen sc1' % (vDB, vDB, srd(rDBG)))


def dbg_issue():
    I('s_cmp_lg_u32 %s, 7' % sW)
    with a.skip_if('s_cbranch_scc1'):
        dbg_load()


def dbg_check():
    def test():
        I('v_cmp_eq_u32 vcc, 1, v%d' % vDB)
        I('s_cmp_eq_u64 vcc, -1')
    I('s_cmp_lg_u32 %s, 7' % sW)
    with a.skip_if('s_cbranch_scc1'):
        spin_check(dbg_load, test, 4)


vFLo = 11


def flag_store(val, off=0):
    I('v_mov_b32 v12, %d' % val)
    I('s_mov_b64 exec, 1')
    I('buffer_store_dword v12, v%d, %s, 0 offen offset:%d sc1' % (vFLo, srd(rWS), off))
    I('s_mov_b64 exec, -1')


def ffn_tile(A, pr, o, soff, off):
    assert pr % 2 == 0
    for i in range(0, 8, 2):
        I('v_pk_mul_f32 %s, %s, %s' % (vr(A + 8 + i, 2), vr(A + 8 + i, 2), vr(pr, 2)))
    for i in range(8):
        I('v_max_f32 v%d, 0, v%d' % (A + i, A + i))
    for i in range(0, 8, 2):
        I('v_pk_mul_f32 %s, %s, %s' % (vr(A + i, 2), vr(A + i, 2), vr(A + 8 + i, 2)))
    for i in range(4):
        I('v_cvt_pk_bf16_f32 v%d, v%d, v%d' % (o + i, A + 2 * i, A + 2 * i + 1))
    I('buffer_store_dwordx4 %s, v%d, %s, %s offen offset:%d sc1' % (vr(o, 4), vHo, srd(rWS), soff, off), tag='h')


def pack8(dst, src):
    for i in range(8):
        I('v_cvt_pk_bf16_f32 v%d, v%d, v%d' % (dst + i, src + 2 * i, src + 2 * i + 1))
```

```python
from g2a import *

LOG2E = 1.4426950408889634


def lane_fields(hh, r3, c, gp):
    I('v_lshrrev_b32 v%d, 5, v%d' % (hh, vL))
    I('v_bfe_u32 v%d, v%d, 2, 2' % (r3, vL))
    I('v_and_b32 v%d, 3, v%d' % (c, vL))
    I('v_bfe_u32 v%d, v%d, 4, 1' % (gp, vL))


def prologue():
    I('s_cmp_ge_u32 s2, 256')
    I('s_cbranch_scc1 L_END')
    if OPT['dbgt']:
        I('s_memtime s[96:97]')
        I('s_memrealtime s[98:99]')
    if OPT['timing']:
        for k in range(1, 21):
            I('s_mov_b32 s%d, 0' % (STAMP0 + 2 * k))
    stamp(0)
    I('s_load_dwordx2 s[%d:%d], s[0:1], 0' % (rX, rX + 1))
    I('s_load_dwordx2 s[%d:%d], s[0:1], 8' % (rQKV, rQKV + 1))
    I('v_lshrrev_b32 v2, 6, v0')
    I('v_and_b32 v%d, 63, v0' % vL)
    I('v_readfirstlane_b32 %s, v2' % sW)
    I('s_and_b32 %s, s2, 3' % sG)
    I('s_bfe_u32 %s, s2, 0x10002' % sT)
    I('s_lshl_b32 %s, %s, 3' % (sT, sT))
    I('s_bfe_u32 %s, s2, 0x30003' % sA)
    I('s_add_u32 %s, %s, %s' % (sT, sT, sA))
    I('s_lshr_b32 %s, s2, 6' % sTY)
    I('s_lshl_b32 %s, %s, 10' % (sMB, sW))
    I('s_and_b32 %s, %s, 2' % (sA, sW))
    I('s_lshl_b32 %s, %s, 2' % (sA, sA))
    I('s_add_u32 %s, %s, 40' % (sA, sA))
    I('s_load_dwordx2 s[%d:%d], s[0:1], %s' % (rGU, rGU + 1, sA))
    I('s_bfe_u32 %s, s2, 0x50002' % sD)
    I('s_cmp_ge_u32 %s, 7' % sD)
    I('s_cselect_b32 %s, 48, 40' % sB)
    I('s_cmp_ge_u32 %s, 14' % sD)
    I('s_cselect_b32 %s, 8, %s' % (sB, sB))
    I('s_load_dwordx2 s[%d:%d], s[0:1], %s' % (rST, rST + 1, sB))
    for r, o in ((rWS, 80), (rDBG, 72), (rPHI, 16), (rWD, 56), (rWO, 24), (rOUT, 64)):
        I('s_load_dwordx2 s[%d:%d], s[0:1], %d' % (r, r + 1, o))
    for r, n in ((rX, 2048 * 896), (rGU, 448 * 3584), (rWS, WS_SIZE), (rWD, 1792 * 896), (rWO, 448 * 896),
                 (rOUT, 2048 * 896), (rDBG, 256), (rQKV, 448 * 2688), (rPHI, 16 * 1568), (rST, 0)):
        I('s_mov_b32 s%d, 0x%x' % (r + 2, n))
        I('s_mov_b32 s%d, 0x00020000' % (r + 3))
    I('v_lshlrev_b32 v%d, 4, v%d' % (vHo, vL))
    stats_offsets()
    I('s_and_b32 %s, %s, 7' % (sCh, sT))
    I('s_lshl_b32 %s, %s, 1' % (sB, sTY))
    I('s_add_u32 %s, %s, %s' % (sCh, sCh, sB))
    I('s_sub_u32 %s, %s, 7' % (sB, sCh))
    I('s_cselect_b32 %s, %s, %s' % (sCh, sCh, sB))
    if not OPT['rot']:
        I('s_mov_b32 %s, 0' % sCh)
    I('s_cmp_ge_u32 %s, 2' % sTY)
    I('s_cbranch_scc1 L_A')


sCh = sCnt
sJ4 = 's47'


def late_setup():
    I('s_lshl_b32 %s, %s, 7' % (sA, sSX))
    I('s_lshl_b32 %s, %s, 2' % (sB, sW))
    I('s_add_u32 %s, %s, %s' % (sA, sA, sB))
    I('s_add_u32 %s, %s, 0x%x' % (sA, sA, WS_FL))
    I('v_mov_b32 v%d, %s' % (vFLo, sA))


def wrap_inc(r, n):
    I('s_add_u32 %s, %s, 1' % (r, r))
    I('s_cmp_eq_u32 %s, %d' % (r, n))
    I('s_cselect_b32 %s, 0, %s' % (r, r))


def fstep(dst, j):
    I('s_add_u32 %s, %s, %d' % (dst, sJ4, j // 3))
    I('s_and_b32 %s, %s, 3' % (dst, dst))
    I('s_mul_i32 %s, %s, 3' % (dst, dst))
    I('s_add_u32 %s, %s, %s' % (dst, dst, sKF))
    if j % 3:
        I('s_add_u32 %s, %s, %d' % (dst, dst, j % 3))


vW0, vW1m, vR2a, vR2b, vH0, vH1, vPo = 2, 4, 5, 6, 7, 8, 9
A2, HB = 160, 224


class W2:
    def __init__(self, regs):
        self.vW0, self.vW1m, self.vRa, self.vRb = regs
        self.base = 0
        self.loc = {}

    def setup(self, t0, t1, t2):
        L = []
        A = L.append
        A('s_lshr_b32 %s, s2, 3' % sA)
        A('s_mul_i32 %s, %s, 37' % (sB, sA))
        A('s_lshr_b32 %s, %s, 8' % (sB, sB))
        A('s_mov_b32 %s, %s' % (sJ4, sB if OPT['rot'] else '0'))
        A('s_mul_i32 %s, %s, 7' % (sC, sB))
        A('s_sub_u32 %s, %s, %s' % (sC, sA, sC))
        A(['s_cmp_ge_u32 %s, 28' % sA, 's_cselect_b32 s%d, 0, s%d' % (rWD + 2, rWD + 2),
           's_cselect_b32 s%d, 0, s%d' % (rWO + 2, rWO + 2)])
        A('s_and_b32 %s, s2, 7' % sA)
        A('s_lshl_b32 %s, %s, 2' % (sA, sA))
        A('s_add_u32 %s, %s, %s' % (sA, sA, sB))
        A('s_lshl_b32 %s, %s, 3' % (sH2, sA))
        A('s_add_u32 %s, %s, %s' % (sH2, sH2, sC))
        A('s_lshl_b32 %s, %s, 7' % (sC, sC))
        A('v_lshrrev_b32 v%d, 3, v%d' % (t0, vL))
        A('v_mul_u32_u24 v%d, 896, v%d' % (t0, t0))
        A('v_bfe_u32 v%d, v%d, 4, 1' % (t1, vL))
        A('v_lshlrev_b32 v%d, 2, v%d' % (t1, t1))
        A('v_and_b32 v%d, 7, v%d' % (t2, vL))
        A('v_xor_b32 v%d, v%d, v%d' % (t1, t1, t2))
        A('v_lshl_add_u32 v%d, v%d, 4, v%d' % (t0, t1, t0))
        A('v_add_u32 v%d, %s, v%d' % (self.vW0, sC, t0))
        A('s_lshr_b32 %s, %s, 1' % (sA, sW))
        A('s_and_b32 %s, %s, 1' % (sB, sW))
        A('s_mul_i32 %s, %s, 28' % (sA, sA))
        A('s_mul_i32 %s, %s, 12' % (sC, sB))
        A('s_add_u32 %s, %s, %s' % (sKF, sA, sC))
        A('s_lshl_b32 %s, %s, 1' % (sC, sB))
        A('s_add_u32 %s, %s, %s' % (sKA, sA, sC))
        A('s_add_u32 %s, %s, 24' % (sKA, sKA))
        A('s_mul_i32 %s, %s, %d' % (sKO, sW, 56 * 896))
        A('v_lshrrev_b32 v%d, 5, v%d' % (t0, vL))
        A('v_bfe_u32 v%d, v%d, 2, 2' % (t1, vL))
        A('v_lshl_add_u32 v%d, v%d, 2, v%d' % (t0, t0, t1))
        A('v_lshlrev_b32 v%d, 7, v%d' % (t0, t0))
        A('v_lshrrev_b32 v%d, 1, v%d' % (t1, t1))
        A('v_lshl_add_u32 v%d, v%d, 6, v%d' % (t0, t1, t0))
        A('v_bfe_u32 v%d, v%d, 4, 1' % (t1, vL))
        A('v_lshl_add_u32 v%d, v%d, 5, v%d' % (t0, t1, t0))
        A('v_and_b32 v%d, 3, v%d' % (t1, vL))
        A('v_lshl_add_u32 v%d, v%d, 3, v%d' % (t0, t1, t0))
        A('s_bfe_u32 %s, %s, 0x10001' % (sA, sW))
        A('s_lshl_b32 %s, %s, 6' % (sA, sA))
        A('s_lshr_b32 %s, %s, 2' % (sB, sW))
        A('s_lshl_b32 %s, %s, 5' % (sB, sB))
        A('s_add_u32 %s, %s, %s' % (sA, sA, sB))
        A('s_lshl_b32 %s, %s, 11' % (sB, sW))
        A('s_add_u32 %s, %s, %s' % (sA, sA, sB))
        A('v_xor_b32 v%d, %s, v%d' % (self.vRa, sA, t0))
        A('v_xor_b32 v%d, 64, v%d' % (self.vRb, self.vRa))
        return L

    def move(self):
        for d, s_ in zip((vW0, vR2a, vR2b), (self.vW0, self.vRa, self.vRb)):
            I('v_mov_b32 v%d, v%d' % (d, s_))
        self.vW0, self.vRa, self.vRb = vW0, vR2a, vR2b
        self.mask()

    def mask(self):
        if self.vW1m is None:
            I('v_mov_b32 v%d, 0x%x' % (vW1m, BIG))
            I('v_cmp_gt_u32 vcc, 32, v%d' % vL)
            I('v_cndmask_b32 v%d, v%d, v%d, vcc' % (vW1m, vW1m, self.vW0))
            self.vW1m = vW1m

    @staticmethod
    def kinfo(i):
        if i < 2:
            return ('A', i)
        if i < 14:
            return ('F', i - 2)
        return ('O', i - 14)

    def dma(self, i, loc):
        self.loc[i] = loc
        kind, j = self.kinfo(i)
        I('s_lshl_b32 %s, %s, 1' % (sD, sMB))
        I('s_add_u32 m0, %s, %d' % (sD, loc))
        if kind == 'O':
            I('s_add_u32 %s, %s, %d' % (sD, sKO, (28 * (j >> 1) + 16 * (j & 1)) * 896))
            r = rWO
        else:
            if kind == 'F':
                fstep(sD, j)
            else:
                I('s_add_u32 %s, %s, %d' % (sD, sKA, j))
            I('s_mul_i32 %s, %s, %d' % (sD, sD, 16 * 896))
            r = rWD
        I('buffer_load_dwordx4 v%d, %s, %s offen lds' % (self.vW0, srd(r), sD), tag=('w2', i))
        I('s_add_u32 %s, %s, %d' % (sD, sD, 8 * 896 - 1024))
        I('buffer_load_dwordx4 v%d, %s, %s offen offset:1024 lds'
          % (self.vW1m if (kind == 'O' and j & 1) else self.vW0, srd(r), sD), tag=('w2', i))

    def read(self, i):
        loc = self.loc[i]
        if not (self.base <= loc and loc + 2048 <= self.base + 65536):
            nb = loc & ~0xffff
            for v in (self.vRa, self.vRb):
                I('v_add_u32 v%d, %d, v%d' % (v, nb - self.base, v))
            self.base = nb
        a.wait_tag(('w2', i))
        for nn, v in enumerate((self.vRa, self.vRb)):
            for s in range(2):
                I('ds_read_b64_tr_b16 %s, v%d offset:%d' % (vr(W2F + 8 * i + 4 * nn + 2 * s, 2), v, loc - self.base + 1024 * s),
                  tag=('w2r', i))

    def wait_read(self, i):
        best = None
        for k, e in enumerate(a.lg):
            if e[2] == ('w2r', i):
                n = a._count_younger(a.lg, k)
                best = n if best is None else min(best, n)
        if best is not None:
            a.wait(lg=best)


class W2Stream:
    def __init__(self, w2):
        self.w2 = w2
        self.free = []
        self.nd = 0
        self.nr = 0

    def give(self, *regions):
        for r in regions:
            self.free.append((16384 * r, None))

    def issue(self, n=99):
        while n > 0 and self.free and self.nd < 18:
            loc, dep = self.free.pop(0)
            if dep is not None:
                self.w2.wait_read(dep)
            self.w2.dma(self.nd, loc)
            self.nd += 1
            n -= 1

    def rd(self):
        if self.nr >= self.nd:
            return
        i = self.nr
        self.w2.read(i)
        self.nr += 1
        self.free.append((self.w2.loc[i], i))

    def step(self):
        if self.nr >= self.nd:
            return
        i = self.nr
        self.w2.read(i)
        self.nr += 1
        self.issue()
        self.free.append((self.w2.loc[i], i))


def x_offsets(vX0, vX1):
    I('v_lshrrev_b32 v12, 3, v%d' % vL)
    I('s_lshl_b32 %s, %s, 7' % (sA, sT))
    I('s_lshl_b32 %s, %s, 4' % (sB, sW))
    I('s_add_u32 %s, %s, %s' % (sA, sA, sB))
    I('v_add_u32 v13, %s, v12' % sA)
    I('v_mul_u32_u24 v13, 896, v13')
    I('v_lshrrev_b32 v14, 4, v%d' % vL)
    I('v_and_b32 v15, 7, v%d' % vL)
    I('v_xor_b32 v6, v14, v15')
    I('v_lshl_add_u32 v%d, v6, 4, v13' % vX0)
    I('v_xor_b32 v6, 4, v6')
    I('v_lshl_add_u32 v%d, v6, 4, v13' % vX1)
    I('v_add_u32 v%d, %d, v%d' % (vX1, 8 * 896 - 1024, vX1))


def path_F():
    vX0, vX1, vWo = 2, 3, 4
    vRX, vRW = [5, 6, 7, 8], [9, 12]
    FB = [120, 140]
    ACC = 160
    WS_, XB = 24576, 98304
    STf, CSf = [96, 102], 108
    w2 = W2((0, None, 13, 15))
    ws = W2Stream(w2)
    x_offsets(vX0, vX1)
    I('s_lshr_b32 %s, %s, 2' % (sA, sW))
    I('s_lshl_b32 %s, %s, 2' % (sA, sA))
    I('s_and_b32 %s, %s, 1' % (sB, sW))
    I('s_add_u32 %s, %s, %s' % (sA, sA, sB))
    I('s_lshl_b32 %s, %s, 2' % (sA, sA))
    I('s_bfe_u32 %s, %s, 0x10001' % (sB, sW))
    I('v_lshrrev_b32 v12, 5, v%d' % vL)
    I('v_bfe_u32 v13, v%d, 3, 2' % vL)
    I('v_lshl_add_u32 v12, v12, 3, v13')
    I('v_add_u32 v12, %s, v12' % sA)
    I('v_mul_u32_u24 v12, 3584, v12')
    I('v_and_b32 v13, 2, v13')
    I('v_bfe_u32 v14, v%d, 1, 2' % vL)
    I('v_sub_u32 v14, v14, v13')
    I('v_subrev_u32 v14, %s, v14' % sB)
    I('v_and_b32 v14, 3, v14')
    I('v_lshl_add_u32 v12, v14, 5, v12')
    I('v_and_b32 v13, 1, v%d' % vL)
    I('v_lshl_add_u32 v12, v13, 4, v12')
    I('s_mul_i32 %s, %s, 7' % (sA, sG))
    I('s_mul_i32 %s, %s, 3' % (sB, sTY))
    I('s_add_u32 %s, %s, %s' % (sKO, sA, sB))
    I('s_lshl_b32 %s, %s, 7' % (sB, sKO))
    I('v_add_u32 v%d, %s, v12' % (vWo, sB))
    I('s_mov_b32 %s, %s' % (sC, sD))
    sXc, sWs, sP8, sCol = 's46', 's%d' % (rQKV + 2), 's%d' % rQKV, 's%d' % (rQKV + 1)
    I('s_mov_b32 %s, %s' % (sXc, sCh))
    I('s_lshl_b32 %s, %s, 1' % (sWs, sCh))

    def xdma(j):
        def x0():
            I('s_lshl_b32 %s, %s, 1' % (sD, sMB))
            I('s_add_u32 m0, %s, %d' % (sD, XB + 16384 * (j & 1)))
            I('s_lshl_b32 %s, %s, 7' % (sD, sXc))
            I('buffer_load_dwordx4 v%d, %s, %s offen lds' % (vX0, srd(rX), sD), tag=('st', 2 * j))
            I('buffer_load_dwordx4 v%d, %s, %s offen offset:1024 lds' % (vX1, srd(rX), sD), tag=('st', 2 * j))
            wrap_inc(sXc, 7)
        return [x0]

    def wdma(s):
        def w(u):
            def f():
                if u == 0:
                    I('s_mul_i32 %s, %s, %d' % (sE, sWs, 32 * 3584))
                    wrap_inc(sWs, 14)
                I('s_add_u32 m0, %s, %d' % (sMB, (s % 4) * WS_ + 8192 * u - 128 * u))
                I('buffer_load_dwordx4 v%d, %s, %s offen offset:%d lds' % (vWo, srd(rGU), sE, 128 * u), tag=('st', s))
            return f
        return [w(0), w(1), w(2)]

    stamp(1, 1)
    a.raw('    s_waitcnt lgkmcnt(0)')
    stamp(2, 1)
    sG7 = sKA
    I('s_mov_b32 %s, %s' % (sG7, sA))
    init_stores()
    stats_issue()
    for d in xdma(0) + wdma(0):
        d()
    stamp(3, 1)
    stamp(1)
    I('s_sub_u32 %s, %s, 7' % (sB, sC))
    I('s_cselect_b32 %s, %s, %s' % (sB, sC, sB))
    I('s_cselect_b32 %s, 0, 28' % sCol)
    I('s_add_u32 %s, %s, %s' % (sA, sG7, sB))
    I('s_add_u32 %s, %s, %s' % (sCol, sCol, sA))
    I('s_sub_u32 %s, %s, 14' % (sB, sC))
    I('s_lshr_b32 %s, %s, 1' % (sD, sB))
    I('s_mul_i32 %s, %s, 7' % (sD, sD))
    I('s_and_b32 %s, %s, 1' % (sB, sB))
    I('s_lshl_b32 %s, %s, 1' % (sE, sG))
    I('s_add_u32 %s, %s, %s' % (sB, sB, sE))
    I('s_add_u32 %s, %s, %s' % (sD, sD, sB))
    I('s_add_u32 %s, %s, 56' % (sE, sD))
    I('s_cmp_ge_u32 %s, 14' % sC)
    I('s_cselect_b32 %s, %s, %s' % (sA, sD, sA))
    I('s_cselect_b32 %s, %s, %s' % (sCol, sE, sCol))
    I('s_cselect_b32 %s, 3, 4' % sP8)
    I('s_mul_i32 %s, %s, 896' % (sP8, sP8))
    I('s_cselect_b32 %s, %s, 0' % (sB, sB))
    I('s_cmp_eq_u32 %s, 7' % sB)
    I('s_cselect_b32 %s, 31, %s' % (sC, sC))
    I('s_lshl_b32 %s, %s, 9' % (sCol, sCol))
    I('s_add_u32 %s, %s, 0x%x' % (sCol, sCol, WS_CS))
    I('s_mul_i32 %s, %s, 448' % (sB, sP8))
    I('s_cmp_lt_u32 %s, 20' % sC)
    I('s_cselect_b32 s%d, %s, 0' % (rST + 2, sB))
    I('s_cselect_b32 %s, %s, 0x%x' % (sCol, sCol, BIG))
    I('s_cselect_b32 %s, %s, 0' % (sA, sA))
    I('s_lshl_b32 %s, %s, 7' % (sA, sA))
    I('s_mul_i32 %s, %s, 56' % (sB, sW))
    I('v_lshrrev_b32 v12, 3, v%d' % vL)
    I('v_add_u32 v12, %s, v12' % sB)
    I('v_mul_u32_u24 v12, %s, v12' % sP8)
    I('v_and_b32 v13, 7, v%d' % vL)
    I('v_lshl_add_u32 v12, v13, 4, v12')
    I('v_add_u32 v%d, %s, v12' % (vSo, sA))
    I('s_lshl_b32 %s, %s, 3' % (sP8, sP8))
    if OPT['spos'] == 2:
        for d in strip_loads(sP8):
            d()
    late_setup()
    for d in wdma(1):
        d()
    hh, r3, c, gp = 12, 13, 14, 15
    lane_fields(hh, r3, c, gp)
    I('v_bfe_u32 v5, v%d, 1, 3' % vL)
    I('v_xor_b32 v5, v5, v%d' % hh)
    I('v_lshlrev_b32 v5, 4, v5')
    I('v_and_b32 v6, 31, v%d' % vL)
    I('v_lshl_add_u32 v5, v6, 7, v5')
    I('s_and_b32 %s, %s, 1' % (sA, sW))
    I('s_lshl_b32 %s, %s, 13' % (sA, sA))
    I('s_add_u32 %s, %s, %d' % (sA, sA, XB))
    I('v_add_u32 v5, %s, v5' % sA)
    I('v_lshl_add_u32 v9, v%d, 2, v%d' % (hh, r3))
    I('v_lshlrev_b32 v9, 7, v9')
    I('v_lshl_add_u32 v9, v%d, 11, v9' % gp)
    I('v_lshl_add_u32 v9, v%d, 3, v9' % c)
    I('v_and_b32 v7, 2, v%d' % r3)
    I('s_lshr_b32 %s, %s, 1' % (sA, sW))
    I('v_add3_u32 v7, v7, v%d, %s' % (gp, sA))
    I('v_and_b32 v7, 3, v7')
    I('v_lshl_add_u32 v9, v7, 5, v9')
    I('v_add_u32 v12, %d, v9' % (2 * WS_))
    for k in range(1, 4):
        I('v_xor_b32 v%d, %d, v5' % (5 + k, 32 * k))
    I('s_lshl_b32 %s, %s, 1' % (sB, sT))
    I('s_and_b32 %s, %s, 1' % (sC, sW))
    I('s_add_u32 %s, %s, %s' % (sB, sB, sC))
    I('s_mul_i32 %s, %s, %d' % (sHB, sB, 2 * 144))
    I('s_lshl_b32 %s, %s, 2' % (sB, sKO))
    I('s_add_u32 %s, %s, %s' % (sB, sB, sA))
    I('s_add_u32 %s, %s, %s' % (sHB, sHB, sB))
    I('s_lshl_b32 %s, %s, 10' % (sHB, sHB))
    I('s_lshl_b32 s%d, %s, 7' % (rPHI, sB))
    fill.add(*w2.setup(93, 94, 95))
    fill.flush()
    stamp(4, 1)
    init_signal()
    stats_compute()
    stamp(5, 1)

    def reads(s, ks, b):
        hi = (s % 4) >> 1
        o = (s % 2) * WS_
        xo = ((s >> 1) & 1) * 16384
        f = FB[b]
        x = ['ds_read_b128 %s, v%d offset:%d' % (vr(f + 4 * ts, 4), vRX[2 * (s & 1) + ks], xo + 4096 * ts) for ts in range(2)]
        w = [['ds_read_b64_tr_b16 %s, v%d offset:%d' % (vr(f + 8 + 4 * u + 2 * sc, 2), vRW[hi],
                                                       o + 8192 * u + 4096 * ks + 1024 * sc) for sc in range(2)]
             for u in range(3)]
        return [[x[0]] + w[0], w[1] + [w[2][0]], [w[2][1], x[1]]]

    def mf(b, first=False):
        f = FB[b]
        return [mfma(ACC + 16 * (3 * ts + u), f + 8 + 4 * u, f + 4 * ts, '0' if first else None)
                for ts in range(2) for u in range(3)]

    def stcs_loads():
        t0, t1 = 118, 119
        I('v_and_b32 v%d, 31, v%d' % (t0, vL))
        I('v_lshlrev_b32 v%d, 4, v%d' % (t1, t0))
        I('s_lshl_b32 %s, %s, 1' % (sA, sT))
        I('s_and_b32 %s, %s, 1' % (sB, sW))
        I('s_add_u32 %s, %s, %s' % (sA, sA, sB))
        I('s_lshl_b32 %s, %s, 10' % (sA, sA))
        I('s_add_u32 %s, %s, 0x%x' % (sA, sA, WS_ST))
        for ts in range(2):
            I('buffer_load_dwordx4 %s, v%d, %s, %s offen offset:%d sc1' % (vr(STf[ts], 4), t1, srd(rWS), sA, 512 * ts))
        I('v_and_b32 v%d, 15, v%d' % (t1, vL))
        I('v_lshlrev_b32 v%d, 3, v%d' % (t1, t1))
        I('v_lshrrev_b32 v%d, 4, v%d' % (t0, vL))
        I('v_mul_u32_u24 v%d, %d, v%d' % (vDB, 1792 * 8, t0))
        I('v_add_u32 v%d, v%d, v%d' % (t1, t1, vDB))
        I('v_lshrrev_b32 v%d, 1, v%d' % (t0, t0))
        I('v_lshl_add_u32 v%d, v%d, 30, v%d' % (t1, t0, t1))
        I('s_add_u32 %s, s%d, 0x%x' % (sA, rPHI, WS_CS))
        for u in range(3):
            I('buffer_load_dwordx2 %s, v%d, %s, %s offen offset:%d sc1' % (vr(CSf + 4 * u, 2), t1, srd(rWS), sA, 512 * u))

    def stcs_test():
        t = CSf + 2
        I('v_min_u32 v%d, v%d, v%d' % (t, STf[0], STf[1]))
        I('v_min3_u32 v%d, v%d, v%d, v%d' % (t + 1, CSf + 1, CSf + 5, CSf + 9))
        I('v_cmp_ne_u32 s[%d:%d], 0, v%d' % (rST, rST + 1, t + 1))
        I('v_cmp_ne_u32 vcc, 0, v%d' % t)
        I('s_and_b32 vcc_lo, vcc_lo, s%d' % rST)
        I('s_cmp_eq_u64 vcc, -1')

    def stcs_check():
        spin_check(stcs_loads, stcs_test, 2)
        for r in [STf[0] + 4, STf[0] + 5, STf[1] + 4, STf[1] + 5] + [CSf + 4 * u + k for u in range(3) for k in (2, 3)]:
            fill.add('v_mov_b32 v%d, 0' % r)

    rd, iss = ws.rd, lambda: ws.issue(1)
    E = []
    if OPT['w2p'] == 0:
        plan = {3: [E, E, E, E, E, [iss]], 4: [E, E, E, E, E, [iss]]}
        for s in range(5, 11):
            plan[s] = [E, E, E, E, [rd], [iss]]
        plan[11] = [[iss], E, E, E, [rd], [iss]]
        plan[12] = [[iss], [iss], [iss], E, [rd], [iss]]
        plan[13] = [[iss], E, [rd], [iss], [rd], [iss]]
    elif OPT['w2p'] == 1:
        plan = {3: [E, E, E, E, E, [iss]], 4: [E, E, E, E, E, [iss]]}
        for s in (6, 7, 9, 10):
            plan[s] = [E, E, E, E, [rd], [iss]]
        plan[11] = [[iss], E, E, E, E, E]
        plan[12] = [[iss], [iss], [iss], E, [rd], [iss]]
        plan[13] = [[iss], [rd], [iss], [rd], [iss], [rd]]
    elif OPT['w2p'] == 2:
        plan = {11: [[iss], [iss], E, [iss], E, E],
                12: [[iss], [iss], E, [iss], E, E],
                13: [[iss], [rd], [iss], [rd], [iss], [rd]]}
    elif OPT['w2p'] == 3:
        plan = {9: [E, E, E, [iss], [iss], E],
                11: [[iss], E, E, [rd], [iss], [rd]],
                12: [[iss], [iss], E, [iss], [iss], E],
                13: [[iss], [rd], [iss], [rd], [iss], [rd]]}
    gives = {3: (8, 9), 11: (3,), 12: (4, 5, 7), 13: (0,)}
    for s in range(14):
        if s == 3:
            fill.flush()
        if s == OPT['dchk'] - 1:
            dbg_issue()
        a.wait_tag(('st', s), lg=0)
        if s == 0:
            stamp(6, 1)
        I('s_barrier')
        stamp(7 + s, 1)
        if s in (0, 1, 4, 8, 12):
            stamp({0: 2, 1: 3, 4: 4, 8: 5, 12: 6}[s])
        ws.give(*gives.get(s, ()))
        d = (xdma(s // 2 + 1) if (s % 2 == 0 and 2 <= s <= 10) else []) + (wdma(s + 3) if s + 3 < 14 else [])
        X = [[] for _ in range(6)]
        for k, x in zip((0, 1, 3, 4) if len(d) == 4 else (0, 1, 2), d):
            X[k].append(x)
        for k, x in enumerate(plan.get(s, [])):
            X[k] += x
        if s == 11:
            X[3].append(w2.mask)
        if s == 3:
            X[2].append(lambda: strip_publish(sCol))
        if s == OPT['dchk'] - 1:
            X[5].append(dbg_check)
        if s == OPT['dchk']:
            X[2].append(stats_store)
        if s == OPT['fchk']:
            X[2] += [fill.flush, stcs_loads]
        if s == 0:
            for g in reads(0, 0, 0):
                for x in g:
                    I(x)
            st, rest = strip_loads(sP8), xdma(1) + wdma(2)
            q = {0: st + rest, 1: rest + st, 2: rest}[OPT['spos']] + d
            n0 = len(q) - 6
            for x in q[:n0]:
                x()
            side = reads(0, 1, 1) + [[], [], []]
            for k in range(6):
                side[k].append(q[n0 + k])
            side[5] += X[5]
            block(mf(0, True), side)
            strip_fill()
            continue
        nf = 6 if s in (1, 2) else None
        block(mf(1), reads(s, 0, 0) + X[:3], nf)
        block(mf(0), reads(s, 1, 1) + X[3:], nf)
    stamp(7)
    rd10 = lambda: ws.rd() if ws.nr < 10 else None
    block(mf(1), [[rd10], [iss], [stcs_check], [rd10], [iss], []])
    fill.flush()
    for ts in range(2):
        for u in range(3):
            I(mfma(ACC + 16 * (3 * ts + u), CSf + 4 * u, STf[ts] + 2))
    w2.move()
    n = 0
    for ts in range(2):
        I('v_mov_b32 v%d, v%d' % (STf[ts], STf[ts] + 1))
    for ts in range(2):
        I('s_add_u32 %s, %s, %d' % (sA, sHB, 144 * 1024 * ts))
        for u in range(3):
            if u:
                I('s_add_u32 %s, %s, 4096' % (sA, sA))
            ffn_tile(ACC + 16 * (3 * ts + u), STf[ts], FB[0] + 4 * n, sA, 0)
            n += 1
            if n < 6 and ws.nr < 10:
                ws.step()
    stamp(8)
    for k in range(OPT['fflag']):
        ws.step()
    a.wait_tag('h')
    flag_store(1)
    stamp(9)
    p2_setup()
    while ws.nr < 18:
        ws.step()
    a.wait(lg=0)
    stamp(10)
    I('s_branch L_H')


slow_blocks = []


def exps(P, En, lab):
    M = En
    I('v_max3_f32 v%d, |v%d|, |v%d|, |v%d|' % (M, P, P + 1, P + 2))
    I('v_max3_f32 v%d, |v%d|, |v%d|, |v%d|' % (M + 1, P + 3, P + 4, P + 5))
    for i in range(6, 16, 4):
        I('v_max3_f32 v%d, |v%d|, |v%d|, v%d' % (M, P + i, P + i + 1, M))
        if i + 3 < 16:
            I('v_max3_f32 v%d, |v%d|, |v%d|, v%d' % (M + 1, P + i + 2, P + i + 3, M + 1))
    I('v_max_f32 v%d, v%d, v%d' % (M, M, M + 1))
    I('v_cmp_nle_f32 vcc, v%d, %s' % (M, sCnt))
    I('s_cbranch_vccnz %s_S' % lab)
    for i in range(16):
        I('v_exp_f32 v%d, -v%d' % (En + i, P + i))
        I('v_exp_f32 v%d, v%d' % (P + i, P + i))
    a.label(lab + '_R')
    a.flush_hazards(1)
    slow_blocks.append((P, En, lab))


def emit_slow(P, En, lab):
    M, m, M2, m2 = 12, 13, 14, 15
    a.label(lab + '_S')
    a.auto = False
    I('v_max3_f32 v%d, v%d, v%d, v%d' % (M, P, P + 1, P + 2))
    I('v_min3_f32 v%d, v%d, v%d, v%d' % (m, P, P + 1, P + 2))
    for i in range(3, 11, 2):
        I('v_max3_f32 v%d, v%d, v%d, v%d' % (M, M, P + i, P + i + 1))
        I('v_min3_f32 v%d, v%d, v%d, v%d' % (m, m, P + i, P + i + 1))
    I('v_max_f32 v%d, v%d, v%d' % (M, M, P + 11))
    I('v_min_f32 v%d, v%d, v%d' % (m, m, P + 11))
    I('s_mov_b32 exec_hi, 0')
    for i in (12, 14):
        I('v_max3_f32 v%d, v%d, v%d, v%d' % (M, M, P + i, P + i + 1))
        I('v_min3_f32 v%d, v%d, v%d, v%d' % (m, m, P + i, P + i + 1))
    I('s_mov_b32 exec_hi, -1')
    I('v_mov_b32 v%d, v%d' % (M2, M))
    I('v_mov_b32 v%d, v%d' % (m2, m))
    I('v_permlane32_swap_b32 v%d, v%d' % (M, M2))
    I('v_permlane32_swap_b32 v%d, v%d' % (m, m2))
    I('v_max_f32 v%d, v%d, v%d' % (M, M, M2))
    I('v_min_f32 v%d, v%d, v%d' % (m, m, m2))
    for i in range(16):
        I('v_sub_f32 v%d, v%d, v%d' % (En + i, m, P + i))
        I('v_sub_f32 v%d, v%d, v%d' % (P + i, P + i, M))
    for i in range(16):
        I('v_exp_f32 v%d, v%d' % (En + i, En + i))
        I('v_exp_f32 v%d, v%d' % (P + i, P + i))
    I('s_mov_b32 exec_lo, 0')
    for i in range(12, 16):
        I('v_mov_b32 v%d, 0' % (P + i))
        I('v_mov_b32 v%d, 0' % (En + i))
    I('s_mov_b32 exec_lo, -1')
    I('s_branch %s_R' % lab)
    a.auto = True


def path_A():
    SL = 49152
    vX0, vX1, vQo, vGo = 2, 3, 4, 5
    vRX, vRQ, vRG = [6, 7, 8, 9], 16, 17
    FB = [120, 140]
    aK, aV, aQ, aF = 192, 208, 224, 240
    STf, CSf = 96, 102
    WF, ON = 20, 28
    AD = 34
    w2 = W2((75, None, 78, 79))
    ws = W2Stream(w2)
    a.label('L_A')
    a.forget()
    x_offsets(vX0, vX1)
    I('s_lshl_b32 %s, %s, 3' % (sA, sW))
    I('v_add_u32 v13, %s, v12' % sA)
    I('v_mul_u32_u24 v13, 2688, v13')
    I('v_and_b32 v14, 1, v14')
    I('v_lshlrev_b32 v14, 2, v14')
    I('v_xor_b32 v14, v14, v15')
    I('v_lshl_add_u32 v13, v14, 4, v13')
    I('s_lshl_b32 %s, %s, 1' % (sA, sG))
    I('s_add_u32 %s, %s, %s' % (sA, sA, sTY))
    I('s_sub_u32 %s, %s, 2' % (sKO, sA))
    I('s_mul_i32 %s, %s, 112' % (sA, sKO))
    I('v_add_u32 v13, %s, v13' % sA)
    I('v_mov_b32 v12, 0x%x' % BIG)
    I('v_cmp_eq_u32 vcc, 7, v14')
    I('v_cndmask_b32 v%d, v13, v12, vcc' % vQo)
    I('s_lshr_b32 %s, %s, 2' % (sA, sW))
    I('s_lshl_b32 %s, %s, 1' % (sA, sA))
    I('s_and_b32 %s, %s, 1' % (sB, sW))
    I('s_add_u32 %s, %s, %s' % (sA, sA, sB))
    I('s_and_b32 %s, %s, 2' % (sB, sW))
    I('s_lshl_b32 %s, %s, 1' % (sC, sB))
    I('s_add_u32 %s, %s, %s' % (sC, sC, sA))
    I('s_lshl_b32 %s, %s, 10' % (sH2, sC))
    I('s_lshl_b32 %s, %s, 4' % (sA, sA))
    I('v_lshrrev_b32 v12, 2, v%d' % vL)
    I('v_add_u32 v12, %s, v12' % sA)
    I('v_mul_u32_u24 v12, 3584, v12')
    I('v_and_b32 v13, 3, v%d' % vL)
    I('v_xor_b32 v13, %s, v13' % sB)
    I('v_lshl_add_u32 v12, v13, 4, v12')
    I('s_mul_i32 %s, %s, 896' % (sA, sG))
    I('s_lshl_b32 %s, %s, 6' % (sB, sTY))
    I('s_add_u32 %s, %s, %s' % (sA, sA, sB))
    I('s_add_u32 %s, %s, %d' % (sA, sA, 768 - 128))
    I('v_add_u32 v%d, %s, v12' % (vGo, sA))
    sCa = 's%d' % (rST + 2)
    I('s_mov_b32 %s, %s' % (sCa, sCh))

    def slot(s):
        return (s % 3) * SL

    def dmas(s):
        sl = slot(s)

        def x0():
            I('s_lshl_b32 %s, %s, 1' % (sD, sMB))
            I('s_add_u32 m0, %s, %d' % (sD, sl))
            I('s_lshl_b32 %s, %s, 7' % (sD, sCa))
            I('buffer_load_dwordx4 v%d, %s, %s offen lds' % (vX0, srd(rX), sD), tag=('st', s))

        def x1():
            I('buffer_load_dwordx4 v%d, %s, %s offen offset:1024 lds' % (vX1, srd(rX), sD), tag=('st', s))
            I('s_mul_i32 %s, %s, %d' % (sE, sCa, 64 * 2688))

        def q(area, io):
            def f():
                I('s_add_u32 m0, %s, %d' % (sMB, sl + area - io))
                I('buffer_load_dwordx4 v%d, %s, %s offen offset:%d lds' % (vQo, srd(rQKV), sE, io), tag=('st', s))
            return f

        def gu():
            I('s_add_u32 m0, %s, %d' % (sH2, sl + 40960))
            I('s_mul_i32 %s, %s, %d' % (sD, sCa, 64 * 3584))
            I('buffer_load_dwordx4 v%d, %s, %s offen lds' % (vGo, srd(rGU), sD), tag=('st', s))
            wrap_inc(sCa, 7)
        return [x0, x1, q(16384, 896), q(24576, 1792), q(32768, 0), gu]

    stamp(1, 1)
    a.raw('    s_waitcnt lgkmcnt(0)')
    stamp(2, 1)
    stats_issue()
    for d in dmas(0):
        d()
    stamp(3, 1)
    stamp(1)

    def wphi_dma():
        I('s_add_u32 m0, %s, %d' % (sMB, WPH))
        I('s_mul_i32 %s, %s, 3136' % (sD, sKO))
        I('s_add_u32 %s, %s, %s' % (sD, sD, sMB))
        I('buffer_load_dwordx4 v%d, %s, %s offen lds' % (vHo, srd(rPHI), sD), tag=('st', 2))
        I('s_mov_b32 %s, %s' % (sPair, sKO))
    sHo, sPair = 's%d' % rPHI, 's%d' % (rPHI + 1)
    late_setup()
    hh, r3, c, gp = 12, 13, 14, 15
    lane_fields(hh, r3, c, gp)
    I('v_bfe_u32 v6, v%d, 1, 3' % vL)
    I('v_xor_b32 v6, v6, v%d' % hh)
    I('v_lshlrev_b32 v6, 4, v6')
    I('v_and_b32 v7, 31, v%d' % vL)
    I('v_lshl_add_u32 v6, v7, 7, v6')
    I('s_and_b32 %s, %s, 3' % (sA, sW))
    I('s_lshl_b32 %s, %s, 12' % (sB, sA))
    I('v_add_u32 v6, %s, v6' % sB)
    for k in range(1, 4):
        I('v_xor_b32 v%d, %d, v6' % (6 + k, 32 * k))
    I('s_lshr_b32 %s, %s, 2' % (sB, sW))
    I('v_lshl_add_u32 v18, v%d, 3, v%d' % (hh, r3))
    I('v_lshlrev_b32 v19, 3, v%d' % c)
    I('v_lshl_add_u32 v%d, v18, 6, v19' % vRG)
    I('v_lshl_add_u32 v%d, v%d, 12, v%d' % (vRG, gp, vRG))
    I('v_xor_b32 v%d, %s, v%d' % (vRQ, sB, gp))
    I('v_lshl_add_u32 v%d, v%d, 5, v%d' % (vRG, vRQ, vRG))
    I('v_lshl_add_u32 v19, v%d, 5, v19' % gp)
    I('v_lshrrev_b32 v%d, 1, v%d' % (vRQ, r3))
    I('v_lshl_add_u32 v19, v%d, 6, v19' % vRQ)
    I('s_mul_i32 %s, %s, 56' % (sC, sB))
    I('v_add_u32 v19, %s, v19' % sC)
    I('v_and_b32 v19, 127, v19')
    I('v_lshl_add_u32 v%d, v18, 7, v19' % vRQ)
    I('v_lshl_add_u32 v18, v%d, 2, v%d' % (hh, r3))
    I('v_mul_u32_u24 v18, 56, v18')
    I('v_lshl_add_u32 v18, v%d, 3, v18' % c)
    I('v_lshl_add_u32 v18, v%d, 5, v18' % gp)
    I('s_mul_i32 %s, %s, 1568' % (sC, sB))
    I('s_add_u32 %s, %s, %d' % (sC, sC, WPH))
    I('v_add_u32 v18, %s, v18' % sC)
    I('s_lshl_b32 %s, %s, 2' % (sC, sT))
    I('s_add_u32 %s, %s, %s' % (sC, sC, sA))
    I('s_mul_i32 %s, %s, %d' % (sHB, sC, 144 * 1024))
    stamp(4, 1)
    stats_compute()
    for d in dmas(1):
        d()
    stamp(5, 1)

    def reads(ks, b):
        f = FB[b]
        x = 'ds_read_b128 %s, v%d' % (vr(f, 4), vRX[ks])
        t = [['ds_read_b64_tr_b16 %s, v%d offset:%d' % (vr(f + 4 + 4 * n + 2 * sc, 2), vRQ, 16384 + 8192 * n + 2048 * ks + 512 * sc)
              for sc in range(2)] for n in range(3)]
        t.append(['ds_read_b64_tr_b16 %s, v%d offset:%d' % (vr(f + 16 + 2 * sc, 2), vRG, 40960 + 1024 * ks + 256 * sc)
                  for sc in range(2)])
        return [[x] + t[0] + t[1][:1], t[1][1:] + t[2], t[3], []]

    def mf(b, first=False):
        f = FB[b]
        return [mfma(aK + 16 * n, f + 4 + 4 * n, f, '0' if first else None) for n in range(4)]

    def adv(s):
        d = slot(s + 1) - slot(s)
        return ['v_add_u32 v%d, %d, v%d' % (r, d, r) for r in vRX + [vRQ, vRG]]

    def wphi_load():
        for q in range(4):
            I('ds_read_b64_tr_b16 %s, v18 offset:%d' % (vr(WF + 2 * q, 2), 448 * q))
        for k in range(6):
            fill.add('v_mov_b32 v%d, 0x3f803f80' % (ON + k))
        fill.add(['s_mov_b32 exec_lo, 0'] + ['v_mov_b32 v%d, 0' % r for r in (WF + 6, WF + 7, ON + 4, ON + 5)]
                 + ['s_mov_b32 exec_lo, 0xf0000000', 's_mov_b32 exec_hi, 0xf0000000']
                 + ['v_mov_b32 v%d, 0' % (WF + k) for k in range(8)] + ['s_mov_b64 exec, -1'])
        fill.add('v_and_b32 v72, 31, v%d' % vL, 's_and_b32 %s, %s, 3' % (sA, sW), 's_lshl_b32 %s, %s, 5' % (sA, sA),
                 'v_lshrrev_b32 v73, 2, v72', 'v_add_u32 v72, %s, v72' % sA, 'v_mul_u32_u24 v72, 320, v72',
                 'v_lshrrev_b32 v74, 5, v%d' % vL, 'v_xor_b32 v73, v73, v74',
                 's_lshr_b32 %s, %s, 2' % (sA, sW), 's_mul_i32 %s, %s, 40960' % (sA, sA),
                 's_add_u32 %s, %s, %d' % (sA, sA, SL), 'v_lshl_add_u32 v72, v73, 3, v72',
                 'v_add_u32 v%d, %s, v72' % (AD, sA))
        for j in range(1, 4):
            fill.add('v_xor_b32 v%d, %d, v%d' % (AD + j, 16 * j, AD))

    def stcs_loads():
        t0, t1 = 72, 73
        I('v_and_b32 v%d, 31, v%d' % (t0, vL))
        I('v_lshlrev_b32 v%d, 4, v%d' % (t1, t0))
        I('s_lshl_b32 %s, %s, 2' % (sA, sT))
        I('s_and_b32 %s, %s, 3' % (sB, sW))
        I('s_add_u32 %s, %s, %s' % (sA, sA, sB))
        I('s_lshl_b32 %s, %s, 9' % (sA, sA))
        I('s_add_u32 %s, %s, 0x%x' % (sA, sA, WS_ST))
        I('buffer_load_dwordx4 %s, v%d, %s, %s offen sc1' % (vr(STf, 4), t1, srd(rWS), sA))
        I('v_lshlrev_b32 v%d, 3, v%d' % (t1, vL))
        I('v_mov_b32 v%d, 0x%x' % (t0, BIG))
        I('v_cmp_gt_u32 vcc, 28, v%d' % vL)
        I('v_cndmask_b32 v%d, v%d, v%d, vcc' % (t1, t0, t1))
        I('s_lshr_b32 %s, %s, 2' % (sB, sW))
        I('s_lshl_b32 %s, %s, 1' % (sA, sPair))
        I('s_add_u32 %s, %s, %s' % (sA, sA, sB))
        I('s_mul_i32 %s, %s, 224' % (sA, sA))
        I('s_add_u32 %s, %s, 0x%x' % (sA, sA, WS_CS + 3584 * 8))
        I('s_add_u32 %s, %s, %d' % (sC, sA, 3584))
        I('buffer_load_dwordx2 %s, v%d, %s, %s offen sc1' % (vr(CSf, 2), t1, srd(rWS), sC))
        I('buffer_load_dwordx2 %s, v%d, %s, %s offen offset:3584 sc1' % (vr(CSf + 4, 2), t1, srd(rWS), sC))
        I('buffer_load_dwordx2 %s, v%d, %s, %s offen sc1' % (vr(CSf + 8, 2), t1, srd(rWS), sA))
        I('v_and_b32 v%d, 15, v%d' % (t1, vL))
        I('v_lshlrev_b32 v%d, 3, v%d' % (t1, t1))
        I('v_lshrrev_b32 v%d, 4, v%d' % (t0, vL))
        I('v_mul_u32_u24 v%d, %d, v%d' % (vDB, 1792 * 8, t0))
        I('v_add_u32 v%d, v%d, v%d' % (t1, t1, vDB))
        I('v_lshrrev_b32 v%d, 1, v%d' % (t0, t0))
        I('v_lshl_add_u32 v%d, v%d, 30, v%d' % (t1, t0, t1))
        I('s_mul_i32 %s, %s, 28' % (sA, sG))
        I('s_lshl_b32 %s, %s, 1' % (sC, sTY))
        I('s_add_u32 %s, %s, %s' % (sA, sA, sC))
        I('s_add_u32 %s, %s, %s' % (sA, sA, sB))
        I('s_add_u32 %s, %s, 20' % (sA, sA))
        I('s_lshl_b32 s%d, %s, 10' % (rPHI, sA))
        I('s_add_u32 s%d, s%d, %s' % (rPHI, rPHI, sHB))
        I('s_lshl_b32 %s, %s, 7' % (sA, sA))
        I('s_add_u32 %s, %s, 0x%x' % (sA, sA, WS_CS))
        I('buffer_load_dwordx2 %s, v%d, %s, %s offen sc1' % (vr(CSf + 12, 2), t1, srd(rWS), sA))

    def stcs_test():
        t = CSf + 2
        I('v_min3_u32 v%d, v%d, v%d, v%d' % (t, CSf + 1, CSf + 5, CSf + 9))
        I('v_cmp_ne_u32 s[%d:%d], 0, v%d' % (rST, rST + 1, t))
        I('v_cmp_ne_u32 s[%d:%d], 0, v%d' % (rST + 2, rST + 3, CSf + 13))
        I('v_cmp_ne_u32 vcc, 0, v%d' % STf)
        I('s_or_b32 s%d, s%d, 0xf0000000' % (rST, rST))
        I('s_and_b32 vcc_lo, vcc_lo, s%d' % rST)
        I('s_and_b32 vcc_lo, vcc_lo, s%d' % (rST + 2))
        I('s_cmp_eq_u64 vcc, -1')

    def stcs_check():
        spin_check(stcs_loads, stcs_test, 2)
        for r in [STf + 4, STf + 5] + [CSf + 4 * u + k for u in range(4) for k in (2, 3)]:
            fill.add('v_mov_b32 v%d, 0' % r)

    for s in range(7):
        if s == OPT['dchk'] - 1:
            dbg_issue()
        a.wait_tag(('st', s), lg=0)
        stamp(6 + 2 * s, 1)
        I('s_barrier')
        stamp(7 + 2 * s, 1)
        if s in (0, 1, 2, 4, 6):
            stamp({0: 2, 1: 3, 2: 4, 4: 5, 6: 6}[s])
        d = dmas(s + 2) if s + 2 < 7 else [None] * 6
        for p in range(4):
            side = reads(p, p & 1)
            if p < 3:
                side[2].append(d[2 * p])
                side[3].append(d[2 * p + 1])
            elif s < 6:
                side[3] += adv(s)
            side = [[x for x in g if x] for g in side]
            if s == 0 and p == 3:
                side[3].append(wphi_dma)
            if s == 2 and p == 2:
                side[3].append(wphi_load)
            if s == OPT['dchk'] - 1 and p == 3:
                side[3].append(dbg_check)
            if s == OPT['dchk'] and p == 0:
                side[3].append(stats_store)
            if s == OPT['achk'] and p == OPT['achkp']:
                side[1] += [fill.flush, stcs_loads]
            if s == 5 and p == 0:
                fill.add(*w2.setup(72, 73, 74))
            if s == 6 and p == 1:
                side[3].append(fill.flush)
                ws.give(8, 9)
            if s == 6 and p >= 2:
                side[3].append(lambda: ws.issue(1))
            if s == 0 and p == 0:
                for g in side:
                    for x in g:
                        x() if callable(x) else I(x)
                fill.pop(24)
            else:
                block(mf(1 - (p & 1), s == 0 and p == 1), side, 7 if s == 0 else None)
    stamp(7)
    block(mf(1), [[stcs_check]])
    fill.flush()
    P, En, SP, SN = 120, 136, 160, 176
    KB, EP, EN = 40, 48, 56
    PQ = 80
    vC = 38
    for n in range(4):
        I(mfma(aK + 16 * n, CSf + 4 * n, STf + 2))
    I('v_mul_f32 v%d, %s, v%d' % (vC, f32(LOG2E), STf))
    I('v_mul_f32 v%d, %s, v%d' % (vC + 1, f32(LOG2E), STf))
    I('v_mov_b32 v76, v%d' % (STf + 1))
    I('v_mov_b32 v77, v%d' % (STf + 1))
    I('s_mov_b32 %s, %s' % (sCnt, f32(60.0)))
    for i in range(0, 16, 2):
        I('v_pk_mul_f32 %s, %s, %s' % (vr(aK + i, 2), vr(aK + i, 2), vr(vC, 2)))
    pack8(KB, aK)
    I(mfma(P, WF, KB, '0'))
    I(mfma(P, WF + 4, KB + 4))
    ffn_tile(aF, 76, 64, sHo, 0)
    exps(P, En, 'XK')
    pack8(EP, P)
    I(mfma(SP, ON, EP, '0'))
    I(mfma(SP, ON + 2, EP + 4))
    pack8(EN, En)
    I(mfma(SN, ON, EN, '0'))
    I(mfma(SN, ON + 2, EN + 4))
    for j in range(4):
        I('ds_write_b64 v%d, %s' % (AD + j, vr(EP + 2 * j, 2)))
        I('ds_write_b64 v%d, %s offset:64' % (AD + j, vr(EN + 2 * j, 2)))
    for i in range(0, 16, 2):
        I('v_pk_mul_f32 %s, %s, %s' % (vr(aQ + i, 2), vr(aQ + i, 2), vr(vC, 2)))
    pack8(KB, aQ)
    I('v_rcp_f32 v68, v%d' % SP)
    I('v_rcp_f32 v70, v%d' % SN)
    I(mfma(PQ, WF, KB, '0'))
    I(mfma(PQ, WF + 4, KB + 4))
    for d_, s_ in ((72, 68), (73, 68), (76, 70), (77, 70)):
        I('v_mul_f32 v%d, v%d, v%d' % (d_, s_, STf))
    for S_, sc, sp, PKd, off in ((SP, 68, 72, P, 128), (SN, 70, 76, P + 8, 192)):
        for i in range(0, 16, 2):
            I('v_pk_mul_f32 %s, %s, %s' % (vr(S_ + i, 2), vr(aV + i, 2), vr(sp, 2)))
        pack8(PKd, S_)
        I('s_mov_b32 exec_lo, 0')
        I('v_cvt_pk_bf16_f32 v%d, v%d, 0' % (PKd + 6, sc))
        I('v_mov_b32 v%d, 0' % (PKd + 7))
        I('s_mov_b32 exec_lo, -1')
        for j in range(4):
            I('ds_write_b64 v%d, %s offset:%d' % (AD + j, vr(PKd + 2 * j, 2), off))
    hh, r3, c, gp = 12, 13, 14, 15
    lane_fields(hh, r3, c, gp)
    I('v_lshl_add_u32 v64, v%d, 3, v%d' % (hh, r3))
    I('v_mul_u32_u24 v64, 320, v64')
    I('v_lshl_add_u32 v65, v%d, 2, v%d' % (gp, c))
    I('v_lshlrev_b32 v66, 1, v%d' % hh)
    I('v_xor_b32 v65, v65, v66')
    I('v_lshl_add_u32 v64, v65, 3, v64')
    I('s_lshr_b32 %s, %s, 1' % (sA, sW))
    I('s_mul_i32 %s, %s, 40960' % (sA, sA))
    I('s_and_b32 %s, %s, 1' % (sB, sW))
    I('s_lshl_b32 %s, %s, 6' % (sB, sB))
    I('s_add_u32 %s, %s, %s' % (sA, sA, sB))
    I('s_add_u32 %s, %s, %d' % (sA, sA, SL))
    I('v_add_u32 v64, %s, v64' % sA)
    I('v_xor_b32 v65, 8, v64')
    I('v_add_u32 v65, %d, v65' % (4 * 320))
    I('v_xor_b32 v66, 32, v64')
    I('v_xor_b32 v67, 32, v65')
    a.wait(lg=0)
    I('s_barrier')
    stamp(8)
    ws.give(0, 1)
    ws.issue()
    I('s_cmp_ge_u32 %s, 4' % sW)
    with a.skip_if('s_cbranch_scc1'):
        FR, KVA = 120, aK
        for i in range(8):
            f = FR + 8 * i
            ad = 64 + 2 * (i & 1)
            for sc in range(2):
                I('ds_read_b64_tr_b16 %s, v%d offset:%d' % (vr(f + 2 * sc, 2), ad + sc, 5120 * i))
            for sc in range(2):
                I('ds_read_b64_tr_b16 %s, v%d offset:%d' % (vr(f + 4 + 2 * sc, 2), ad + sc, 5120 * i + 128))
            if i >= 2:
                k = i - 2
                I(mfma(KVA + 16 * (k & 1), FR + 8 * k, FR + 8 * k + 4, '0' if k < 2 else None))
        for k in (6, 7):
            I(mfma(KVA + 16 * (k & 1), FR + 8 * k, FR + 8 * k + 4))
        I('s_lshl_b32 %s, %s, 2' % (sA, sPair))
        I('s_add_u32 %s, %s, %s' % (sA, sA, sW))
        I('s_lshl_b32 %s, %s, 12' % (sA, sA))
        I('s_add_u32 %s, %s, 0x%x' % (sA, sA, WS_KV))
        I('v_lshlrev_b32 v64, 2, v%d' % vL)
        for i in range(0, 16, 2):
            I('v_pk_add_f32 %s, %s, %s' % (vr(KVA + i, 2), vr(KVA + i, 2), vr(KVA + 16 + i, 2)))
        for r in range(16):
            if r == 12:
                I('s_mov_b32 exec_hi, 0')
            I('buffer_atomic_add_f32 v%d, v64, %s, %s offen offset:%d sc1' % (KVA + r, srd(rWS), sA, 256 * r), tag='kv')
        I('s_mov_b32 exec_hi, -1')
    stamp(9)
    exps(PQ, En, 'XQ')
    pack8(aQ, PQ)
    pack8(aQ + 8, En)
    w2.move()
    a.wait_tag('h')
    flag_store(1)
    ws.step()
    ws.step()
    I('s_cmp_ge_u32 %s, 4' % sW)
    with a.skip_if('s_cbranch_scc1'):
        a.wait_tag('kv')
        flag_store(1, 32)
    stamp(10)
    vKP, vKV = 12 + 228, 13 + 228
    I('v_and_b32 v%d, 15, v%d' % (vKP, vL))
    I('v_lshlrev_b32 v%d, 11, v%d' % (vKP, vKP))
    I('s_and_b32 %s, %s, 15' % (sA, sSX))
    I('s_lshl_b32 %s, %s, 7' % (sA, sA))
    I('s_lshr_b32 %s, %s, 1' % (sB, sW))
    I('s_lshl_b32 %s, %s, 2' % (sB, sB))
    I('s_add_u32 %s, %s, %s' % (sA, sA, sB))
    I('s_add_u32 %s, %s, 0x%x' % (sA, sA, WS_FL + 32))
    I('v_add_u32 v%d, %s, v%d' % (vKP, sA, vKP))

    def kv_issue():
        I('buffer_load_dword v%d, v%d, %s, 0 offen sc1' % (vKV, vKP, srd(rWS)))

    def kv_test():
        I('v_cmp_ne_u32 vcc, 0, v%d' % vKV)
        I('s_cmp_eq_u64 vcc, -1')
    while ws.nr < OPT['kvpos'] - 1:
        ws.step()
    kv_issue()
    ws.step()
    spin_check(kv_issue, kv_test)
    stamp(11)
    KVL = 32768
    I('s_lshl_b32 %s, %s, 1' % (sA, sMB))
    I('s_add_u32 m0, %s, %d' % (sA, KVL))
    I('s_lshl_b32 %s, %s, 14' % (sB, sPair))
    I('s_add_u32 %s, %s, %s' % (sA, sA, sB))
    I('s_add_u32 %s, %s, 0x%x' % (sA, sA, WS_KV))
    for q in range(2):
        I('buffer_load_dwordx4 v%d, %s, %s offen offset:%d sc1 lds' % (vHo, srd(rWS), sA, 1024 * q), tag='kvl')
    ws.step()
    ws.step()
    KR, KF, OP, ON_ = 160, 240, 192, 208
    I('s_lshr_b32 %s, %s, 2' % (sA, sW))
    I('s_lshl_b32 %s, %s, 13' % (sB, sA))
    I('s_add_u32 %s, %s, %d' % (sB, sB, KVL))
    I('v_lshl_add_u32 v12, v%d, 2, %s' % (vL, sB))
    I('s_lshl_b32 %s, %s, 1' % (sB, sPair))
    I('s_add_u32 %s, %s, %s' % (sA, sA, sB))
    I('s_lshl_b32 %s, %s, 11' % (sA, sA))
    I('s_add_u32 %s, %s, %s' % (sA, sA, sHB))
    I('s_add_u32 %s, %s, %d' % (sHo, sA, 112 * 1024))
    a.wait_tag('kvl', lg=0)
    I('s_barrier')
    stamp(12)
    ws.give(3, 4, 5, 6, 7)
    for r in range(0, 32, 2):
        I('ds_read2st64_b32 %s, v12 offset0:%d offset1:%d' % (vr(KR + r, 2), r, r + 1))
    for i in range(16):
        I('v_mov_b32 v%d, 0x3f803f80' % (KF + i))
    I('s_mov_b32 exec_lo, 0xdfffffff')
    for q in range(4):
        for i in range(4 * q, 4 * q + 4):
            if i % 8 == 0:
                I('s_mov_b32 exec_hi, 0xdfffffff')
            if i % 8 == 6:
                I('s_mov_b32 exec_hi, -1')
            I('v_cvt_pk_bf16_f32 v%d, v%d, v%d' % (KF + i, KR + 2 * i, KR + 2 * i + 1))
    I('s_mov_b32 exec_lo, -1')
    for q in range(4):
        I(mfma(OP + 16 * (q >> 1), KF + 4 * q, aQ + 4 * q, None if q & 1 else '0'))
    ws.issue(2)
    t = KR
    I('v_rcp_f32 v%d, v%d' % (t, OP + 13))
    I('v_rcp_f32 v%d, v%d' % (t + 1, ON_ + 13))
    I('v_mul_f32 v%d, v%d, v%d' % (t + 2, OP + 12, t))
    I('v_fma_f32 v%d, v%d, v%d, v%d' % (t + 2, ON_ + 12, t + 1, t + 2))
    I('v_add_f32 v%d, %s, v%d' % (t + 2, f32(1e-6), t + 2))
    I('v_rcp_f32 v%d, v%d' % (t + 2, t + 2))
    I('v_mul_f32 v%d, v%d, v%d' % (t, t, t + 2))
    I('v_mul_f32 v%d, v%d, v%d' % (t + 1, t + 1, t + 2))
    I('v_mov_b32 v%d, v%d' % (t + 2, t))
    I('v_mov_b32 v%d, v%d' % (t + 3, t + 1))
    I('v_permlane32_swap_b32 v%d, v%d' % (t + 2, t))
    I('v_permlane32_swap_b32 v%d, v%d' % (t + 3, t + 1))
    I('v_mov_b32 v%d, v%d' % (t + 2, t + 1))
    I('v_mov_b32 v%d, v%d' % (t + 3, t + 1))
    I('v_mov_b32 v%d, v%d' % (t + 1, t))
    for i in range(0, 16, 2):
        I('v_pk_mul_f32 %s, %s, %s' % (vr(OP + i, 2), vr(OP + i, 2), vr(t, 2)))
    for i in range(0, 16, 2):
        I('v_pk_fma_f32 %s, %s, %s, %s' % (vr(OP + i, 2), vr(ON_ + i, 2), vr(t + 2, 2), vr(OP + i, 2)))
    pack8(KR + 8, OP)
    for q in range(2):
        I('buffer_store_dwordx4 %s, v%d, %s, %s offen offset:%d sc1' % (vr(KR + 8 + 4 * q, 4), vHo, srd(rWS), sHo, 1024 * q), tag='o')
    stamp(13)
    ws.step()
    ws.step()
    a.wait_tag('o')
    flag_store(2)
    stamp(14)
    I('s_cmp_lt_u32 s2, 224')
    with a.skip_if('s_cbranch_scc1'):
        a.raw('    s_waitcnt vmcnt(0) lgkmcnt(0)')
        I('s_branch L_FIN')
    p2_setup()
    while ws.nr < 18:
        ws.step()
    a.wait(lg=0)
    stamp(15)


vOo, vXR, vPv = 11, 12, 16 - 16


def p2_setup():
    t0, t1 = HB, HB + 1
    I('s_and_b32 %s, %s, 7' % (sC, sH2))
    I('s_lshr_b32 %s, %s, 3' % (sB, sH2))
    I('s_mul_i32 %s, %s, %d' % (sH2, sB, 2 * 144 * 1024))
    I('s_and_b32 %s, %s, 1' % (sA, sW))
    I('s_mul_i32 %s, %s, %d' % (sD, sA, 144 * 1024))
    I('v_add_u32 v%d, %s, v%d' % (vH0, sD, vHo))
    I('s_xor_b32 %s, %s, %d' % (sD, sD, 144 * 1024))
    I('v_add_u32 v%d, %s, v%d' % (vH1, sD, vHo))
    I('s_lshl_b32 %s, %s, 1' % (sD, sB))
    I('s_add_u32 %s, %s, %s' % (sD, sD, sA))
    I('s_lshl_b32 %s, %s, 5' % (sD, sD))
    I('v_and_b32 v%d, 31, v%d' % (t0, vL))
    I('v_add_u32 v%d, %s, v%d' % (t0, sD, t0))
    I('v_mul_u32_u24 v%d, 896, v%d' % (t0, t0))
    I('v_lshrrev_b32 v%d, 5, v%d' % (t1, vL))
    I('v_lshl_add_u32 v%d, v%d, 4, v%d' % (t0, t1, t0))
    I('s_lshl_b32 %s, %s, 7' % (sC, sC))
    I('s_bfe_u32 %s, %s, 0x10001' % (sD, sW))
    I('s_lshl_b32 %s, %s, 6' % (sD, sD))
    I('s_add_u32 %s, %s, %s' % (sC, sC, sD))
    I('s_lshr_b32 %s, %s, 2' % (sD, sW))
    I('s_lshl_b32 %s, %s, 5' % (sD, sD))
    I('s_add_u32 %s, %s, %s' % (sC, sC, sD))
    I('v_add_u32 v%d, %s, v%d' % (vOo, sC, t0))
    I('buffer_load_dwordx4 %s, v%d, %s, 0 offen' % (vr(vXR, 4), vOo, srd(rX)))
    I('s_lshr_b32 %s, %s, 1' % (sC, sB))
    I('s_and_b32 %s, %s, 1' % (sB, sB))
    I('s_lshl_b32 %s, %s, 4' % (sC, sC))
    I('s_lshr_b32 %s, %s, 1' % (sD, sW))
    I('s_lshl_b32 %s, %s, 2' % (sD, sD))
    I('s_add_u32 %s, %s, %s' % (sC, sC, sD))
    I('s_add_u32 %s, %s, %s' % (sC, sC, sA))
    I('s_lshl_b32 %s, %s, 7' % (sC, sC))
    I('s_add_u32 %s, %s, 0x%x' % (sC, sC, WS_FL))
    I('s_lshl_b32 %s, %s, 2' % (sB, sB))
    I('s_add_u32 %s, %s, %s' % (sC, sC, sB))
    I('v_and_b32 v%d, 3, v%d' % (t0, vL))
    I('v_lshl_add_u32 v%d, v%d, 3, %s' % (vPo, t0, sC))
    I('s_add_u32 %s, %s, %s' % (sC, sC, sB))
    I('s_add_u32 %s, %s, 256' % (sC, sC))
    I('v_and_b32 v%d, 1, v%d' % (t0, vL))
    I('v_bfe_u32 v%d, v%d, 1, 1' % (t1, vL))
    I('v_lshlrev_b32 v%d, 2, v%d' % (t0, t0))
    I('v_lshl_add_u32 v%d, v%d, 4, v%d' % (t0, t1, t0))
    I('v_add_u32 v%d, %s, v%d' % (t0, sC, t0))
    I('v_cmp_gt_u32 vcc, 4, v%d' % vL)
    I('v_cndmask_b32 v%d, v%d, v%d, vcc' % (vPo, t0, vPo))


def h_stream():
    a.label('L_H')
    a.forget()

    def issue():
        I('buffer_load_dword v%d, v%d, %s, 0 offen sc1' % (vPv, vPo, srd(rWS)))

    def need(mask, val):
        def test():
            I('v_cmp_le_u32 vcc, %d, v%d' % (val, vPv))
            I('s_and_b32 %s, vcc_lo, 0x%x' % (sA, mask))
            I('s_cmp_eq_u32 %s, 0x%x' % (sA, mask))
        spin_check(issue, test)

    def load(i):
        kind, j = W2.kinfo(i)
        G = 3 if kind == 'F' else 4
        if j % G == 0:
            if kind == 'O':
                I('s_lshl_b32 %s, %s, 12' % (sE, sW))
                I('s_add_u32 %s, %s, %d' % (sE, sE, 112 * 1024))
            elif kind == 'F':
                fstep(sE, j)
                I('s_lshl_b32 %s, %s, 10' % (sE, sE))
            else:
                I('s_lshl_b32 %s, %s, 10' % (sE, sKA))
            I('s_add_u32 %s, %s, %s' % (sE, sE, sH2))
        for tt, v in enumerate((vH0, vH1)):
            I('buffer_load_dwordx4 %s, v%d, %s, %s offen offset:%d%s'
              % (vr(HB + 8 * (i % 4) + 4 * tt, 4), v, srd(rWS), sE, 1024 * (j % G), ' sc1' if OPT['hsc'] else ''))

    gates = {0: (0xf0, 1), 2: (0x0f, 1), 14: (0xf0, 2)}
    issue()

    def gated_load(i):
        if i in gates:
            need(*gates[i])
            if i == 2:
                stamp(16)
            if i == 14:
                stamp(17)
        load(i)
        if i == 11:
            issue()
    for i in range(4):
        gated_load(i)
    for i in range(18):
        for tt in range(2):
            for nn in range(2):
                I(mfma(A2 + 16 * (2 * nn + tt), W2F + 8 * i + 4 * nn, HB + 8 * (i % 4) + 4 * tt, '0' if i == 0 else None))
        if i + 4 < 18:
            gated_load(i + 4)
    stamp(18)
    piece = [None] + [16384 * r for r in (0, 3, 4, 5, 7, 8, 9)]
    I('s_lshl_b32 %s, %s, 1' % (sA, sMB))
    I('v_add_u32 v2, %s, v%d' % (sA, vHo))
    I('v_add_u32 v3, 65536, v2')
    I('v_add_u32 v4, 131072, v2')

    def areg(q, base):
        p = piece[q]
        return base + (p >> 16), p & 0xffff
    for q in range(1, 8):
        v, o = areg(q, 2)
        r = A2 + 16 * (q & 3) + 8 * (q >> 2)
        I('ds_write_b128 v%d, %s offset:%d' % (v, vr(r, 4), o))
        I('ds_write_b128 v%d, %s offset:%d' % (v, vr(r + 4, 4), o + 1024))
    for q in range(1, 8):
        I('v_xor_b32 v%d, %d, v%d' % (16 + q, 2048 * q, areg(q, 2)[0]))
    X = 32
    for i in range(4):
        I('v_lshlrev_b32 v%d, 16, v%d' % (X + 2 * i, vXR + i))
        I('v_and_b32 v%d, 0xffff0000, v%d' % (X + 2 * i + 1, vXR + i))
    a.wait(lg=0)
    I('s_barrier')
    stamp(19)
    R = 48
    for q in range(1, 8):
        o = areg(q, 2)[1]
        I('ds_read_b128 %s, v%d offset:%d' % (vr(R + 8 * q, 4), 16 + q, o))
        I('ds_read_b128 %s, v%d offset:%d' % (vr(R + 8 * q + 4, 4), 16 + q, o + 1024))
    K = A2
    for q in range(1, 8):
        for i in range(0, 8, 2):
            I('v_pk_add_f32 %s, %s, %s' % (vr(K + i, 2), vr(K + i, 2), vr(R + 8 * q + i, 2)))
    for i in range(4):
        I('v_permlane32_swap_b32 v%d, v%d' % (K + i, K + 4 + i))
    for i in range(0, 8, 2):
        I('v_pk_add_f32 %s, %s, %s' % (vr(K + i, 2), vr(K + i, 2), vr(X + i, 2)))
    for i in range(4):
        I('v_cvt_pk_bf16_f32 v%d, v%d, v%d' % (X + 8 + i, K + 2 * i, K + 2 * i + 1))
    I('buffer_store_dwordx4 %s, v%d, %s, 0 offen' % (vr(X + 8, 4), vOo, srd(rOUT)))
    stamp(20)


def main():
    k1 = NAME + '_kernel'
    out = '; generated by gen/g2.py (hand-designed schedule; see gen/NOTES.md)\n'
    out += '; @launch grid=(256,1,1) block=(512,1,1) lds=163840\n'
    out += '.amdgcn_target "amdgcn-amd-amdhsa--gfx950"\n.text\n'
    a.raw('.globl %s\n.p2align 8\n.type %s,@function\n%s:\n' % (k1, k1, k1))
    prologue()
    path_F()
    path_A()
    h_stream()
    a.label('L_FIN')
    a.forget()
    stamp_flush()
    if OPT['dbgt']:
        a.raw('    s_waitcnt vmcnt(0)')
        I('s_memtime s[92:93]')
        I('s_memrealtime s[94:95]')
        a.raw('    s_waitcnt lgkmcnt(0)')
        I('s_sub_u32 s92, s92, s96')
        I('s_not_b32 s98, s98')
        I('v_mov_b32 v2, s94')
        I('v_writelane_b32 v2, s98, 1')
        I('v_writelane_b32 v2, s92, 2')
        I('v_lshlrev_b32 v3, 2, v%d' % vL)
        I('s_lshl_b32 %s, s2, 3' % sE)
        I('s_add_u32 %s, %s, %s' % (sE, sE, sW))
        I('s_lshl_b32 %s, %s, 8' % (sE, sE))
        I('s_add_u32 %s, %s, 0x%x' % (sE, sE, WS_TM))
        I('buffer_store_dword v2, v3, %s, %s offen' % (srd(rWS), sE))
    a.label('L_END')
    I('s_endpgm')
    for b in slow_blocks:
        emit_slow(*b)
    out += a.text()
    out += '''.section .rodata,"a"
.p2align 6
.amdhsa_kernel %s
  .amdhsa_next_free_vgpr 256
  .amdhsa_next_free_sgpr 102
  .amdhsa_accum_offset 256
  .amdhsa_group_segment_fixed_size 0
  .amdhsa_kernarg_size 88
  .amdhsa_user_sgpr_count 2
  .amdhsa_user_sgpr_kernarg_segment_ptr 1
  .amdhsa_system_sgpr_workgroup_id_x 1
.end_amdhsa_kernel
''' % k1
    open(sys.argv[1], 'w').write(out)


main()
```

```python
import sys
import os
import struct
sys.path.insert(0, os.path.dirname(os.path.abspath(__file__)))
from asmtool import Asm

NAME = 'parallel_sum__linear_kernel_hedgehog__glu_gated_reglu__prompt'
OPT = dict(timing=0, tset=0, dbgt=0, kvpos=10, fchk=11, achk=5, achkp=2, dchk=2, nfill=5, fflag=2, rot=1, fbyte=5, abyte=2, hsc=1, spos=0, pd=-1, ps=1, pf=2, pw=6, wend=12, fe=0, apw=20, aearly=1, wn=2, pfs=5, fpre=2)
for arg in sys.argv[2:]:
    k, v = arg.split('=')
    OPT[k] = int(v)

WS_KV = 0x1000000
WS_FL = 0x1020000
WS_ST = 0x1028000
WS_CS = 0x1030000
WS_WF = 0x103a000
WS_KF = 0x103c000
WS_W2 = 0xa00000
WS_TM = 0x1200000
WS_SIZE = 0x10000000
BIG = 0x40000000
SPIN = 50000
HS = 2.0 ** -40
PART = 147456
STL = PART + 1024
DUMMY = PART + 2048
WPH = PART + 4096

sW, sG, sT, sTY, sMB = 's3', 's4', 's5', 's6', 's7'
rX, rGU, rST, rWS, rWD, rWO, rOUT, rDBG, rQKV, rPHI = 8, 12, 16, 20, 24, 28, 32, 36, 40, 44
sA, sB, sC, sD, sE = 's48', 's49', 's50', 's51', 's52'
sHB, sCnt, sKF, sKA, sKO, sH2, sSX = 's53', 's54', 's55', 's56', 's57', 's58', 's59'
STAMP0 = 60

vL, vHo = 1, 10
W2F = 16


def srd(r):
    return 's[%d:%d]' % (r, r + 3)


def vr(b, n=1):
    return 'v[%d:%d]' % (b, b + n - 1) if n > 1 else 'v%d' % b


def f32(x):
    return '0x%08x' % struct.unpack('<I', struct.pack('<f', x))[0]


a = Asm()
I = a.I


def mfma(d, x, y, c=None):
    return 'v_mfma_f32_32x32x16_bf16 %s, %s, %s, %s' % (vr(d, 16), vr(x, 4), vr(y, 4), vr(d, 16) if c is None else c)


nstamp = [0]


def stamp(k, tset=0):
    if OPT['timing'] and (k == 0 or tset == OPT['tset']):
        assert k < 21
        a.raw('    s_mem%stime s[%d:%d]' % ('real' if OPT['timing'] == 2 else '', STAMP0 + 2 * k, STAMP0 + 2 * k + 1))


def stamp_flush():
    if not OPT['timing']:
        return
    a.raw('    s_waitcnt lgkmcnt(0)')
    I('v_mov_b32 v2, 0')
    for k in range(21):
        I('v_writelane_b32 v2, s%d, %d' % (STAMP0 + 2 * k, k))
    I('s_lshl_b32 %s, s2, 3' % sE)
    I('s_add_u32 %s, %s, %s' % (sE, sE, sW))
    I('s_lshl_b32 %s, %s, 8' % (sE, sE))
    I('s_add_u32 %s, %s, 0x%x' % (sE, sE, WS_TM))
    I('v_lshlrev_b32 v3, 2, v%d' % vL)
    I('buffer_store_dword v2, v3, %s, %s offen' % (srd(rWS), sE))


class Fill:
    def __init__(self):
        self.q = []

    def add(self, *items):
        for it in items:
            self.q.append(it)

    def pop(self, n):
        while n > 0 and self.q:
            it = self.q.pop(0)
            if callable(it):
                it()
                n -= 3
            elif isinstance(it, (list, tuple)):
                for s in it:
                    I(s)
                n -= len(it)
            else:
                I(it)
                n -= 1

    def flush(self):
        self.pop(1 << 30)


fill = Fill()


def block(mf, side, nfill=None):
    nfill = OPT['nfill'] if nfill is None else nfill
    for i, m in enumerate(mf):
        I(m)
        for s in (side[i] if i < len(side) else []):
            if callable(s):
                s()
            else:
                I(s)
        fill.pop(nfill)


def spin_check(issue, test, slp=1):
    lp, done = a.newlabel('SPL'), a.newlabel('SPD')
    test()
    I('s_cbranch_scc1 %s' % done)
    I('s_mov_b32 %s, %d' % (sCnt, SPIN))
    a.label(lp)
    a.auto = False
    n = len(a.vm)
    I('s_sleep %d' % slp)
    issue()
    a.raw('    s_waitcnt vmcnt(0)')
    I('s_sub_u32 %s, %s, 1' % (sCnt, sCnt))
    I('s_cbranch_scc1 %s' % done)
    test()
    I('s_cbranch_scc0 %s' % lp)
    del a.vm[n:]
    a.auto = True
    a.label(done)


eD, eX, eA, eT = 16, 96, 100, 108
vSo, vXs = 116, 118


def stats_offsets():
    I('v_mov_b32 v14, 0x%x' % BIG)
    I('s_lshl_b32 %s, %s, 2' % (sB, sG))
    I('s_add_u32 %s, %s, %s' % (sB, sB, sTY))
    I('s_lshl_b32 %s, %s, 4' % (sC, sT))
    I('s_add_u32 %s, %s, %s' % (sSX, sB, sC))
    I('s_lshl_b32 %s, %s, 3' % (sB, sSX))
    I('s_add_u32 %s, %s, %s' % (sB, sB, sW))
    I('s_mul_i32 %s, %s, 896' % (sB, sB))
    I('v_add_u32 v12, %s, v%d' % (sB, vHo))
    I('v_cmp_gt_u32 vcc, 56, v%d' % vL)
    I('v_cndmask_b32 v%d, v14, v12, vcc' % vXs)


def stats_issue():
    I('buffer_load_dwordx4 %s, v%d, %s, 0 offen' % (vr(eX, 4), vXs, srd(rX)))


def stats_compute():
    S1, S2, t0, t1, S3, S4 = eT, eT + 1, eT + 2, eT + 3, eT + 4, eT + 5
    I('v_lshlrev_b32 v%d, 16, v%d' % (S1, eX))
    I('v_and_b32 v%d, 0xffff0000, v%d' % (S3, eX))
    I('v_mul_f32 v%d, v%d, v%d' % (S2, S1, S1))
    I('v_mul_f32 v%d, v%d, v%d' % (S4, S3, S3))
    for d in range(1, 4):
        for x in ('v_lshlrev_b32 v%d, 16, v%d' % (t0, eX + d), 'v_and_b32 v%d, 0xffff0000, v%d' % (t1, eX + d),
                  'v_add_f32 v%d, v%d, v%d' % (S1, S1, t0), 'v_fmac_f32 v%d, v%d, v%d' % (S2, t0, t0),
                  'v_add_f32 v%d, v%d, v%d' % (S3, S3, t1), 'v_fmac_f32 v%d, v%d, v%d' % (S4, t1, t1)):
            I(x)
    I('v_add_f32 v%d, v%d, v%d' % (S1, S1, S3))
    I('v_add_f32 v%d, v%d, v%d' % (S2, S2, S4))
    red = []
    for m in ('row_shr:1', 'row_shr:2', 'row_shr:4', 'row_shr:8'):
        red.append(['v_add_f32_dpp v%d, v%d, v%d %s row_mask:0xf bank_mask:0xf bound_ctrl:0' % (s, s, s, m) for s in (S1, S2)])
    red.append(['v_add_f32_dpp v%d, v%d, v%d row_bcast:15 row_mask:0xa bank_mask:0xf' % (s, s, s) for s in (S1, S2)])
    red.append(['v_add_f32_dpp v%d, v%d, v%d row_bcast:31 row_mask:0xc bank_mask:0xf' % (s, s, s) for s in (S1, S2)])
    R = eX
    red += [['v_mul_f32 v%d, %s, v%d' % (S1, f32(-1.0 / 448), S1), 'v_mul_f32 v%d, %s, v%d' % (S2, f32(1.0 / 448), S2)],
            ['v_fma_f32 v%d, -v%d, v%d, v%d' % (S2, S1, S1, S2), 'v_cvt_pk_bf16_f32 v%d, v%d, v%d' % (t0, S1, S1)],
            ['v_max_f32 v%d, 0, v%d' % (S2, S2), 'v_lshlrev_b32 v%d, 16, v%d' % (t0, t0)],
            ['v_add_f32 v%d, %s, v%d' % (S2, f32(1e-5), S2), 'v_sub_f32 v%d, v%d, v%d' % (t0, S1, t0)],
            ['v_rsq_f32 v%d, v%d' % (R, S2), 'v_cvt_pk_bf16_f32 v%d, v%d, v%d' % (R + 2, S1, t0)],
            ['v_rcp_f32 v%d, v%d' % (R + 1, S2), 'v_mov_b32 v%d, v%d' % (R + 3, R + 2)]]
    for g in red:
        for x in g:
            I(x)


def stats_store():
    I('s_lshl_b32 %s, %s, 3' % (sD, sSX))
    I('s_add_u32 %s, %s, %s' % (sD, sD, sW))
    I('s_lshl_b32 %s, %s, 4' % (sD, sD))
    I('s_add_u32 %s, %s, 0x%x' % (sD, sD, WS_ST - 63 * 16))
    I('s_mov_b32 exec_lo, 0')
    I('s_mov_b32 exec_hi, 0x80000000')
    I('buffer_store_dwordx4 %s, v%d, %s, %s offen sc1' % (vr(eX, 4), vHo, srd(rWS), sD))
    I('s_mov_b64 exec, -1')


def strip_loads(sPitch8):
    def ld(q):
        def f():
            I('s_mul_i32 %s, %s, %d' % (sD, sPitch8, q))
            I('buffer_load_dwordx4 %s, v%d, %s, %s offen' % (vr(eD + 4 * q, 4), vSo, srd(rST), sD))
        return f
    return [ld(q) for q in range(7)]


def strip_fill():
    F = fill.add
    t0, t1, t2, t3 = eT, eT + 1, eT + 2, eT + 3
    for d in range(4):
        F('v_lshlrev_b32 v%d, 16, v%d' % (eA + 2 * d, eD + d), 'v_and_b32 v%d, 0xffff0000, v%d' % (eA + 2 * d + 1, eD + d))
    for q in range(1, 7):
        for d in range(0, 4, 2):
            r = eD + 4 * q + d
            F('v_lshlrev_b32 v%d, 16, v%d' % (t0, r), 'v_and_b32 v%d, 0xffff0000, v%d' % (t1, r),
              'v_lshlrev_b32 v%d, 16, v%d' % (t2, r + 1), 'v_and_b32 v%d, 0xffff0000, v%d' % (t3, r + 1))
            for k in range(4):
                F('v_add_f32 v%d, v%d, v%d' % (eA + 2 * d + k, eA + 2 * d + k, t0 + k))
    for i in range(0, 8, 2):
        F('v_permlane32_swap_b32 v%d, v%d' % (eA + i, eA + i + 1))
    for i in range(0, 8, 2):
        F('v_add_f32 v%d, v%d, v%d' % (eA + i, eA + i, eA + i + 1))
    F('v_and_b32 v%d, 7, v%d' % (t0, vL), 'v_bfe_u32 v%d, v%d, 4, 1' % (t1, vL))
    F('v_permlane16_swap_b32 v%d, v%d' % (eA, eA + 2), 'v_permlane16_swap_b32 v%d, v%d' % (eA + 4, eA + 6))
    F('v_lshlrev_b32 v%d, 5, v%d' % (t0, t0), 'v_lshl_add_u32 v%d, v%d, 3, v%d' % (t0, t1, t0))
    F('v_add_f32 v%d, v%d, v%d' % (eA, eA, eA + 2), 'v_add_f32 v%d, v%d, v%d' % (eA + 4, eA + 4, eA + 6))
    F('v_lshrrev_b32 v%d, 5, v%d' % (t1, vL), 'v_lshl_add_u32 v%d, v%d, 2, v%d' % (t0, t1, t0))
    F(['s_lshl_b32 %s, %s, 8' % (sA, sW), 's_add_u32 %s, %s, %d' % (sA, sA, PART), 'v_add_u32 v%d, %s, v%d' % (t0, sA, t0)])
    F(*['v_add_f32_dpp v%d, v%d, v%d row_shr:8 row_mask:0xf bank_mask:0xf bound_ctrl:0' % (s, s, s) for s in (eA, eA + 4)])
    F(['s_mov_b32 exec_lo, 0xff00ff00', 's_mov_b32 exec_hi, 0xff00ff00',
       'ds_write2_b32 v%d, v%d, v%d offset1:4' % (t0, eA, eA + 4), 's_mov_b64 exec, -1'])


def strip_publish(sCol):
    t = eT
    I('s_cmp_lg_u32 %s, 0' % sW)
    with a.skip_if('s_cbranch_scc1'):
        I('v_lshlrev_b32 v%d, 2, v%d' % (t, vL))
        I('v_add_u32 v%d, %d, v%d' % (t, PART, t))
        for k in range(4):
            I('ds_read2st64_b32 %s, v%d offset0:%d offset1:%d' % (vr(eA + 2 * k, 2), t, 2 * k, 2 * k + 1))
        I('v_lshl_add_u32 v%d, v%d, 3, %s' % (t + 1, vL, sCol))
        for k in range(4):
            I('v_add_f32 v%d, v%d, v%d' % (eA + 2 * k, eA + 2 * k, eA + 2 * k + 1))
        I('v_add_f32 v%d, v%d, v%d' % (eA, eA, eA + 2))
        I('v_add_f32 v%d, v%d, v%d' % (eA + 4, eA + 4, eA + 6))
        I('v_add_f32 v%d, v%d, v%d' % (eA, eA, eA + 4))
        I('v_cvt_pk_bf16_f32 v%d, v%d, v%d' % (eA + 2, eA, eA))
        I('v_lshlrev_b32 v%d, 16, v%d' % (eA + 1, eA + 2))
        I('v_sub_f32 v%d, v%d, v%d' % (eA, eA, eA + 1))
        I('v_cvt_pk_bf16_f32 v%d, v%d, v%d' % (eA + 3, eA, eA))
        I('v_mov_b32 v%d, 0x80008000' % eA)
        I('v_cmp_eq_u32 vcc, 0, v%d' % (eA + 3))
        I('v_cndmask_b32 v%d, v%d, v%d, vcc' % (eA + 3, eA + 3, eA))
        I('buffer_store_dwordx2 %s, v%d, %s, 0 offen sc1' % (vr(eA + 2, 2), t + 1, srd(rWS)))


INITW = 112


def init_cond():
    I('s_lshr_b32 %s, s2, 4' % sA)
    I('s_lshl_b32 %s, %s, 4' % (sB, sW))
    I('s_add_u32 %s, %s, %s' % (sA, sA, sB))
    I('s_cmp_lg_u32 %s, %d' % (sA, INITW >> 4))


def init_stores():
    init_cond()
    with a.skip_if('s_cbranch_scc1'):
        for k in range(4):
            I('v_mov_b32 v%d, 0' % (120 + k))
        I('s_and_b32 %s, s2, 15' % sA)
        I('s_mul_i32 %s, %s, %d' % (sA, sA, 16 * 1024))
        I('s_add_u32 %s, %s, 0x%x' % (sA, sA, WS_KV))
        for k in range(16):
            if k and k % 4 == 0:
                I('s_add_u32 %s, %s, 4096' % (sA, sA))
            I('buffer_store_dwordx4 v[120:123], v%d, %s, %s offen offset:%d sc1' % (vHo, srd(rWS), sA, 1024 * (k % 4)), tag='init')


def init_signal():
    init_cond()
    with a.skip_if('s_cbranch_scc1'):
        a.wait_tag('init')
        I('s_and_b32 %s, s2, 15' % sA)
        I('s_lshl_b32 %s, %s, 2' % (sA, sA))
        I('v_mov_b32 v120, 1')
        I('v_mov_b32 v121, %s' % sA)
        I('s_mov_b64 exec, 1')
        I('buffer_store_dword v120, v121, %s, 0 offen sc1' % srd(rDBG))
        I('s_mov_b64 exec, -1')


vDB = 14


def dbg_load():
    I('v_and_b32 v%d, 15, v%d' % (vDB, vL))
    I('v_lshlrev_b32 v%d, 2, v%d' % (vDB, vDB))
    I('buffer_load_dword v%d, v%d, %s, 0 offen sc1' % (vDB, vDB, srd(rDBG)))


def dbg_issue():
    I('s_cmp_lg_u32 %s, 7' % sW)
    with a.skip_if('s_cbranch_scc1'):
        dbg_load()


def dbg_check():
    def test():
        I('v_cmp_eq_u32 vcc, 1, v%d' % vDB)
        I('s_cmp_eq_u64 vcc, -1')
    I('s_cmp_lg_u32 %s, 7' % sW)
    with a.skip_if('s_cbranch_scc1'):
        spin_check(dbg_load, test, 4)


vFLo = 11


def flag_store(val, off=0):
    I('v_mov_b32 v9, %d' % val)
    I('s_mov_b64 exec, 1')
    I('buffer_store_dword v9, v%d, %s, 0 offen offset:%d sc1' % (vFLo, srd(rWS), off))
    I('s_mov_b64 exec, -1')


def ffn_tile(A, pr, o, soff, off):
    assert pr % 2 == 0
    for i in range(0, 8, 2):
        I('v_pk_mul_f32 %s, %s, %s clamp' % (vr(A + i, 2), vr(A + i, 2), vr(pr, 2)))
    for i in range(0, 8, 2):
        I('v_pk_mul_f32 %s, %s, %s' % (vr(A + i, 2), vr(A + i, 2), vr(A + 8 + i, 2)))
    for i in range(4):
        I('v_cvt_pk_bf16_f32 v%d, v%d, v%d' % (o + i, A + 2 * i, A + 2 * i + 1))
    I('buffer_store_dwordx4 %s, v%d, %s, %s offen offset:%d sc1' % (vr(o, 4), vHo, srd(rWS), soff, off), tag='h')


def pack8(dst, src):
    for i in range(8):
        I('v_cvt_pk_bf16_f32 v%d, v%d, v%d' % (dst + i, src + 2 * i, src + 2 * i + 1))
```

```python
from g2a import *

LOG2E = 1.4426950408889634


def lane_fields(hh, r3, c, gp):
    I('v_lshrrev_b32 v%d, 5, v%d' % (hh, vL))
    I('v_bfe_u32 v%d, v%d, 2, 2' % (r3, vL))
    I('v_and_b32 v%d, 3, v%d' % (c, vL))
    I('v_bfe_u32 v%d, v%d, 4, 1' % (gp, vL))


def prologue():
    I('s_cmp_ge_u32 s2, 256')
    I('s_cbranch_scc1 L_END')
    if OPT['dbgt']:
        I('s_memtime s[96:97]')
        I('s_memrealtime s[98:99]')
    if OPT['timing']:
        for k in range(1, 21):
            I('s_mov_b32 s%d, 0' % (STAMP0 + 2 * k))
    stamp(0)
    I('s_load_dwordx2 s[%d:%d], s[0:1], 0' % (rX, rX + 1))
    I('s_load_dwordx2 s[%d:%d], s[0:1], 8' % (rQKV, rQKV + 1))
    I('v_lshrrev_b32 v2, 6, v0')
    I('v_and_b32 v%d, 63, v0' % vL)
    I('v_readfirstlane_b32 %s, v2' % sW)
    I('s_and_b32 %s, s2, 3' % sG)
    I('s_bfe_u32 %s, s2, 0x10002' % sT)
    I('s_lshl_b32 %s, %s, 3' % (sT, sT))
    I('s_bfe_u32 %s, s2, 0x30003' % sA)
    I('s_add_u32 %s, %s, %s' % (sT, sT, sA))
    I('s_lshr_b32 %s, s2, 6' % sTY)
    I('s_lshl_b32 %s, %s, 10' % (sMB, sW))
    I('s_and_b32 %s, %s, 2' % (sA, sW))
    I('s_lshl_b32 %s, %s, 2' % (sA, sA))
    I('s_add_u32 %s, %s, 40' % (sA, sA))
    I('s_load_dwordx2 s[%d:%d], s[0:1], %s' % (rGU, rGU + 1, sA))
    I('s_bfe_u32 %s, s2, 0x50002' % sD)
    I('s_cmp_ge_u32 %s, 7' % sD)
    I('s_cselect_b32 %s, 48, 40' % sB)
    I('s_cmp_ge_u32 %s, 14' % sD)
    I('s_cselect_b32 %s, 8, %s' % (sB, sB))
    I('s_load_dwordx2 s[%d:%d], s[0:1], %s' % (rST, rST + 1, sB))
    I('s_cmp_ge_u32 s2, 98')
    I('s_cselect_b32 %s, 24, 56' % sB)
    I('s_load_dwordx2 s[%d:%d], s[0:1], %s' % (rWD, rWD + 1, sB))
    for r, o in ((rWS, 80), (rDBG, 72), (rPHI, 16), (rWO, 80), (rOUT, 64)):
        I('s_load_dwordx2 s[%d:%d], s[0:1], %d' % (r, r + 1, o))
    for r, n in ((rX, 2048 * 896), (rGU, 448 * 3584), (rWS, WS_SIZE), (rWD, 1792 * 896), (rWO, WS_SIZE),
                 (rOUT, 2048 * 896), (rDBG, 256), (rQKV, 448 * 2688), (rPHI, 16 * 1568), (rST, 0)):
        I('s_mov_b32 s%d, 0x%x' % (r + 2, n))
        I('s_mov_b32 s%d, 0x00020000' % (r + 3))
    I('v_lshlrev_b32 v%d, 4, v%d' % (vHo, vL))
    stats_offsets()
    I('s_and_b32 %s, %s, 7' % (sCh, sT))
    I('s_lshl_b32 %s, %s, 1' % (sB, sTY))
    I('s_add_u32 %s, %s, %s' % (sCh, sCh, sB))
    I('s_sub_u32 %s, %s, 7' % (sB, sCh))
    I('s_cselect_b32 %s, %s, %s' % (sCh, sCh, sB))
    if not OPT['rot']:
        I('s_mov_b32 %s, 0' % sCh)
    I('s_cmp_ge_u32 %s, 2' % sTY)
    I('s_cbranch_scc1 L_A')


sCh = sCnt
sJ4 = 's47'


def late_setup():
    I('s_lshl_b32 %s, %s, 7' % (sA, sSX))
    I('s_lshl_b32 %s, %s, 2' % (sB, sW))
    I('s_add_u32 %s, %s, %s' % (sA, sA, sB))
    I('s_add_u32 %s, %s, 0x%x' % (sA, sA, WS_FL))
    I('v_mov_b32 v%d, %s' % (vFLo, sA))


def wrap_inc(r, n):
    I('s_add_u32 %s, %s, 1' % (r, r))
    I('s_cmp_eq_u32 %s, %d' % (r, n))
    I('s_cselect_b32 %s, 0, %s' % (r, r))


def fstep(dst, j):
    I('s_add_u32 %s, %s, %d' % (dst, sJ4, j // 3))
    I('s_and_b32 %s, %s, 3' % (dst, dst))
    I('s_mul_i32 %s, %s, 3' % (dst, dst))
    I('s_add_u32 %s, %s, %s' % (dst, dst, sKF))
    if j % 3:
        I('s_add_u32 %s, %s, %d' % (dst, dst, j % 3))


vOo, vH0, vH1, vPo = 5, 6, 7, 8
A2, HB = 160, 224
sW2, sWo = sKO, 's43'


def kinfo(i):
    if i < 2:
        return ('A', i)
    if i < 14:
        return ('F', i - 2)
    return ('O', i - 14)


def cons_setup(vP):
    L = []
    A = L.append
    A('s_lshr_b32 %s, s2, 3' % sA)
    A('s_mul_i32 %s, %s, 37' % (sB, sA))
    A('s_lshr_b32 %s, %s, 8' % (sB, sB))
    A('s_mov_b32 %s, %s' % (sJ4, sB if OPT['rot'] else '0'))
    A('s_mul_i32 %s, %s, 7' % (sC, sB))
    A('s_sub_u32 %s, %s, %s' % (sC, sA, sC))
    if OPT['rot'] == 2:
        A('s_add_u32 %s, %s, %s' % (sJ4, sJ4, sC))
    A('s_and_b32 %s, s2, 7' % sA)
    A('s_lshl_b32 %s, %s, 2' % (sA, sA))
    A('s_add_u32 %s, %s, %s' % (sA, sA, sB))
    A('s_lshl_b32 %s, %s, 3' % (sH2, sA))
    A('s_add_u32 %s, %s, %s' % (sH2, sH2, sC))
    A('s_lshl_b32 %s, %s, 3' % (sC, sC))
    A('s_add_u32 %s, %s, %s' % (sC, sC, sW))
    A('s_mul_i32 %s, %s, %d' % (sW2, sC, 36864))
    A('s_add_u32 %s, %s, 0x%x' % (sW2, sW2, WS_W2))
    A('s_lshl_b32 %s, %s, 7' % (sC, sC))
    A('s_add_u32 %s, %s, 0x%x' % (sC, sC, WS_WF))
    A('v_min_u32 v%d, 17, v%d' % (vP, vL))
    A('v_lshl_add_u32 v%d, v%d, 2, %s' % (vP, vP, sC))
    A('s_lshr_b32 %s, %s, 1' % (sA, sW))
    A('s_and_b32 %s, %s, 1' % (sB, sW))
    A('s_mul_i32 %s, %s, 28' % (sA, sA))
    A('s_mul_i32 %s, %s, 12' % (sC, sB))
    A('s_add_u32 %s, %s, %s' % (sKF, sA, sC))
    A('s_lshl_b32 %s, %s, 1' % (sC, sB))
    A('s_add_u32 %s, %s, %s' % (sKA, sA, sC))
    A('s_add_u32 %s, %s, 24' % (sKA, sKA))
    return L


class Prod:
    vA, vB, vRa, vRb, FR, vS, vF = 44, 45, 46, 47, 48, 56, 57
    LOC = 131072

    def setup(self, t0, t1, t2):
        L = []
        A = L.append
        A('v_lshrrev_b32 v%d, 3, v%d' % (t0, vL))
        A('v_mul_u32_u24 v%d, 896, v%d' % (t0, t0))
        A('v_bfe_u32 v%d, v%d, 4, 1' % (t1, vL))
        A('v_lshlrev_b32 v%d, 2, v%d' % (t1, t1))
        A('v_and_b32 v%d, 7, v%d' % (t2, vL))
        A('v_xor_b32 v%d, v%d, v%d' % (t1, t1, t2))
        A('v_lshl_add_u32 v%d, v%d, 4, v%d' % (t0, t1, t0))
        A('s_mul_i32 %s, s2, 147' % sA)
        A('s_lshr_b32 %s, %s, 10' % (sA, sA))
        A('s_mul_i32 %s, %s, 7' % (sB, sA))
        A('s_sub_u32 %s, s2, %s' % (sB, sB))
        A('v_lshl_add_u32 v%d, %s, 7, v%d' % (t0, sB, t0))
        A('s_lshl_b32 %s, %s, 3' % (sB, sB))
        A('s_add_u32 %s, %s, %s' % (sB, sB, sW))
        A('s_lshl_b32 %s, %s, 5' % (sC, sB))
        A('s_add_u32 %s, %s, %s' % (sC, sC, sA))
        A('s_lshl_b32 %s, %s, 2' % (sC, sC))
        A('s_add_u32 %s, %s, 0x%x' % (sC, sC, WS_WF))
        A(['s_cmp_ge_u32 s2, 126', 's_cselect_b32 %s, 0x%x, %s' % (sC, BIG, sC)])
        A('v_mov_b32 v%d, %s' % (self.vF, sC))
        A('s_mul_i32 %s, %s, 18' % (sB, sB))
        A('s_add_u32 %s, %s, %s' % (sB, sB, sA))
        A('s_lshl_b32 %s, %s, 11' % (sB, sB))
        A('s_add_u32 %s, %s, 0x%x' % (sB, sB, WS_W2))
        A(['s_cmp_ge_u32 s2, 126', 's_cselect_b32 %s, 0x%x, %s' % (sB, BIG, sB)])
        A('v_add_u32 v%d, %s, v%d' % (self.vS, sB, vHo))
        A('s_sub_u32 %s, %s, 2' % (sB, sKF))
        A(['s_cmp_lt_u32 %s, 2' % sA, 's_cselect_b32 %s, %s, %s' % (sB, sKA, sB)])
        A('s_add_u32 %s, %s, %s' % (sB, sB, sA))
        A('s_lshl_b32 %s, %s, 4' % (sB, sB))
        A('s_lshr_b32 %s, %s, 4' % (sC, sA))
        A('s_lshl1_add_u32 %s, %s, %s' % (sC, sW, sC))
        A('s_mul_i32 %s, %s, 28' % (sC, sC))
        A('s_and_b32 %s, %s, 1' % (sA, sA))
        A('s_lshl4_add_u32 %s, %s, %s' % (sC, sA, sC))
        A(['s_cmp_ge_u32 s2, 98', 's_cselect_b32 %s, %s, %s' % (sB, sC, sB), 's_cselect_b32 %s, %s, 0' % (sA, sA),
           's_cselect_b32 s%d, 0x%x, s%d' % (rWD + 2, 448 * 896, rWD + 2)])
        A(['s_cmp_ge_u32 s2, 126', 's_cselect_b32 s%d, 0, s%d' % (rWD + 2, rWD + 2)])
        A('s_mul_i32 %s, %s, 896' % (sB, sB))
        A('v_add_u32 v%d, %s, v%d' % (self.vA, sB, t0))
        A('s_mul_i32 %s, %s, 0x%x' % (sA, sA, BIG >> 5))
        A('v_and_b32 v%d, 32, v%d' % (t1, vL))
        A('v_mul_lo_u32 v%d, v%d, %s' % (t1, t1, sA))
        A('v_add_u32 v%d, %d, v%d' % (t1, 8 * 896 - 1024, t1))
        A('v_add_u32 v%d, v%d, v%d' % (self.vB, self.vA, t1))
        A('v_lshrrev_b32 v%d, 5, v%d' % (t0, vL))
        A('v_bfe_u32 v%d, v%d, 2, 2' % (t1, vL))
        A('v_lshl_add_u32 v%d, v%d, 2, v%d' % (t0, t0, t1))
        A('v_lshlrev_b32 v%d, 7, v%d' % (t0, t0))
        A('v_lshrrev_b32 v%d, 1, v%d' % (t1, t1))
        A('v_lshl_add_u32 v%d, v%d, 6, v%d' % (t0, t1, t0))
        A('v_bfe_u32 v%d, v%d, 4, 1' % (t1, vL))
        A('v_lshl_add_u32 v%d, v%d, 5, v%d' % (t0, t1, t0))
        A('v_and_b32 v%d, 3, v%d' % (t1, vL))
        A('v_lshl_add_u32 v%d, v%d, 3, v%d' % (t0, t1, t0))
        A('s_bfe_u32 %s, %s, 0x10001' % (sA, sW))
        A('s_lshl_b32 %s, %s, 6' % (sA, sA))
        A('s_lshr_b32 %s, %s, 2' % (sB, sW))
        A('s_lshl_b32 %s, %s, 5' % (sB, sB))
        A('s_add_u32 %s, %s, %s' % (sA, sA, sB))
        A('s_lshl_b32 %s, %s, 11' % (sB, sW))
        A('s_add_u32 %s, %s, %s' % (sA, sA, sB))
        A('s_add_u32 %s, %s, %d' % (sA, sA, self.LOC))
        A('v_xor_b32 v%d, %s, v%d' % (self.vRa, sA, t0))
        A('v_xor_b32 v%d, 64, v%d' % (self.vRb, self.vRa))
        return L

    def dma(self):
        I('s_lshl_b32 %s, %s, 1' % (sD, sMB))
        I('s_add_u32 m0, %s, %d' % (sD, self.LOC))
        I('buffer_load_dwordx4 v%d, %s, 0 offen lds' % (self.vA, srd(rWD)), tag='pd')
        I('buffer_load_dwordx4 v%d, %s, 0 offen offset:1024 lds' % (self.vB, srd(rWD)), tag='pd')

    def read(self):
        a.wait_tag('pd')
        for nn, v in enumerate((self.vRa, self.vRb)):
            for s in range(2):
                I('ds_read_b64_tr_b16 %s, v%d offset:%d' % (vr(self.FR + 4 * nn + 2 * s, 2), v, 1024 * s))

    def store(self):
        for nn in range(2):
            I('buffer_store_dwordx4 %s, v%d, %s, 0 offen offset:%d sc1'
              % (vr(self.FR + 4 * nn, 4), self.vS, srd(rWS), 1024 * nn), tag='ps')

    def flag(self):
        I('v_mov_b32 v%d, 1' % self.vS)
        a.wait_tag('ps')
        I('s_mov_b64 exec, 1')
        I('buffer_store_dword v%d, v%d, %s, 0 offen sc1' % (self.vS, self.vF, srd(rWS)))
        I('s_mov_b64 exec, -1')


class W2L:
    def __init__(self):
        self.cur = None

    def ld(self, k):
        i, nn = k >> 1, k & 1
        kind, j = kinfo(i)
        if kind == 'F':
            key, off = ('F', j // 3, (j % 3) >> 1), 2048 * ((j % 3) & 1)
            if key != self.cur:
                if self.cur == ('F', j // 3, 0):
                    I('s_add_u32 %s, %s, 4096' % (sWo, sWo))
                else:
                    I('s_add_u32 %s, %s, %d' % (sWo, sJ4, j // 3))
                    I('s_and_b32 %s, %s, 3' % (sWo, sWo))
                    I('s_mul_i32 %s, %s, 6144' % (sWo, sWo))
                    I('s_add_u32 %s, %s, %s' % (sWo, sWo, sW2))
                    I('s_add_u32 %s, %s, %d' % (sWo, sWo, 4096 + 4096 * key[2]))
        else:
            key, off = (kind, i >> 1), 2048 * (i & 1)
            if key != self.cur:
                I('s_add_u32 %s, %s, %d' % (sWo, sW2, 4096 * (i >> 1)))
        self.cur = key
        I('buffer_load_dwordx4 %s, v%d, %s, %s offen offset:%d sc1'
          % (vr(W2F + 4 * k, 4), vHo, srd(rWO), sWo, off + 1024 * nn))

    def steps(self, *ii):
        for i in ii:
            self.ld(2 * i)
            self.ld(2 * i + 1)


def wf_poll(vP, vV):
    def issue():
        I('buffer_load_dword v%d, v%d, %s, 0 offen sc1' % (vV, vP, srd(rWS)))

    def test():
        I('v_cmp_ne_u32 vcc, 0, v%d' % vV)
        I('s_cmp_eq_u64 vcc, -1')
    return issue, test


def x_offsets(vX0, vX1):
    I('v_lshrrev_b32 v12, 3, v%d' % vL)
    I('s_lshl_b32 %s, %s, 7' % (sA, sT))
    I('s_lshl_b32 %s, %s, 4' % (sB, sW))
    I('s_add_u32 %s, %s, %s' % (sA, sA, sB))
    I('v_add_u32 v13, %s, v12' % sA)
    I('v_mul_u32_u24 v13, 896, v13')
    I('v_lshrrev_b32 v14, 4, v%d' % vL)
    I('v_and_b32 v15, 7, v%d' % vL)
    I('v_xor_b32 v6, v14, v15')
    I('v_lshl_add_u32 v%d, v6, 4, v13' % vX0)
    I('v_xor_b32 v6, 4, v6')
    I('v_lshl_add_u32 v%d, v6, 4, v13' % vX1)
    I('v_add_u32 v%d, %d, v%d' % (vX1, 8 * 896 - 1024, vX1))


def path_F():
    vX0, vX1, vWo = 2, 3, 4
    vRX, vRW = [5, 6, 7, 8], [9, 12]
    FB = [120, 140]
    ACC = 160
    WS_, XB = 24576, 98304
    STf, CSf = [96, 102], 108
    pr, wl = Prod(), W2L()
    wf_issue, wf_test = wf_poll(13, 15)
    x_offsets(vX0, vX1)
    I('s_lshr_b32 %s, %s, 2' % (sA, sW))
    I('s_lshl_b32 %s, %s, 2' % (sA, sA))
    I('s_and_b32 %s, %s, 1' % (sB, sW))
    I('s_add_u32 %s, %s, %s' % (sA, sA, sB))
    I('s_lshl_b32 %s, %s, 2' % (sA, sA))
    I('s_bfe_u32 %s, %s, 0x10001' % (sB, sW))
    I('v_lshrrev_b32 v12, 5, v%d' % vL)
    I('v_bfe_u32 v13, v%d, 3, 2' % vL)
    I('v_lshl_add_u32 v12, v12, 3, v13')
    I('v_add_u32 v12, %s, v12' % sA)
    I('v_mul_u32_u24 v12, 3584, v12')
    I('v_and_b32 v13, 2, v13')
    I('v_bfe_u32 v14, v%d, 1, 2' % vL)
    I('v_sub_u32 v14, v14, v13')
    I('v_subrev_u32 v14, %s, v14' % sB)
    I('v_and_b32 v14, 3, v14')
    I('v_lshl_add_u32 v12, v14, 5, v12')
    I('v_and_b32 v13, 1, v%d' % vL)
    I('v_lshl_add_u32 v12, v13, 4, v12')
    I('s_mul_i32 %s, %s, 7' % (sA, sG))
    I('s_mul_i32 %s, %s, 3' % (sB, sTY))
    I('s_add_u32 %s, %s, %s' % (sKO, sA, sB))
    I('s_lshl_b32 %s, %s, 7' % (sB, sKO))
    I('v_add_u32 v%d, %s, v12' % (vWo, sB))
    I('s_mov_b32 %s, %s' % (sC, sD))
    sXc, sWs, sP8, sCol = 's46', 's%d' % (rQKV + 2), 's%d' % rQKV, 's%d' % (rQKV + 1)
    I('s_mov_b32 %s, %s' % (sXc, sCh))
    I('s_lshl_b32 %s, %s, 1' % (sWs, sCh))

    def xdma(j):
        def x0():
            I('s_lshl_b32 %s, %s, 1' % (sD, sMB))
            I('s_add_u32 m0, %s, %d' % (sD, XB + 16384 * (j & 1)))
            I('s_lshl_b32 %s, %s, 7' % (sD, sXc))
            I('buffer_load_dwordx4 v%d, %s, %s offen lds' % (vX0, srd(rX), sD), tag=('st', 2 * j))
            I('buffer_load_dwordx4 v%d, %s, %s offen offset:1024 lds' % (vX1, srd(rX), sD), tag=('st', 2 * j))
            wrap_inc(sXc, 7)
        return [x0]

    def wdma(s):
        def w(u):
            def f():
                if u == 0:
                    I('s_mul_i32 %s, %s, %d' % (sE, sWs, 32 * 3584))
                    wrap_inc(sWs, 14)
                I('s_add_u32 m0, %s, %d' % (sMB, (s % 4) * WS_ + 8192 * u - 128 * u))
                I('buffer_load_dwordx4 v%d, %s, %s offen offset:%d lds' % (vWo, srd(rGU), sE, 128 * u), tag=('st', s))
            return f
        return [w(0), w(1), w(2)]

    stamp(1, 1)
    a.raw('    s_waitcnt lgkmcnt(0)')
    stamp(2, 1)
    sG7 = sKA
    I('s_mov_b32 %s, %s' % (sG7, sA))
    init_stores()
    stats_issue()
    for d in xdma(0) + wdma(0):
        d()
    stamp(3, 1)
    stamp(1)
    I('s_sub_u32 %s, %s, 7' % (sB, sC))
    I('s_cselect_b32 %s, %s, %s' % (sB, sC, sB))
    I('s_cselect_b32 %s, 0, 28' % sCol)
    I('s_add_u32 %s, %s, %s' % (sA, sG7, sB))
    I('s_add_u32 %s, %s, %s' % (sCol, sCol, sA))
    I('s_sub_u32 %s, %s, 14' % (sB, sC))
    I('s_lshr_b32 %s, %s, 1' % (sD, sB))
    I('s_mul_i32 %s, %s, 7' % (sD, sD))
    I('s_and_b32 %s, %s, 1' % (sB, sB))
    I('s_lshl_b32 %s, %s, 1' % (sE, sG))
    I('s_add_u32 %s, %s, %s' % (sB, sB, sE))
    I('s_add_u32 %s, %s, %s' % (sD, sD, sB))
    I('s_add_u32 %s, %s, 56' % (sE, sD))
    I('s_cmp_ge_u32 %s, 14' % sC)
    I('s_cselect_b32 %s, %s, %s' % (sA, sD, sA))
    I('s_cselect_b32 %s, %s, %s' % (sCol, sE, sCol))
    I('s_cselect_b32 %s, 3, 4' % sP8)
    I('s_mul_i32 %s, %s, 896' % (sP8, sP8))
    I('s_cselect_b32 %s, %s, 0' % (sB, sB))
    I('s_cmp_eq_u32 %s, 7' % sB)
    I('s_cselect_b32 %s, 31, %s' % (sC, sC))
    I('s_lshl_b32 %s, %s, 9' % (sCol, sCol))
    I('s_add_u32 %s, %s, 0x%x' % (sCol, sCol, WS_CS))
    I('s_mul_i32 %s, %s, 448' % (sB, sP8))
    I('s_cmp_lt_u32 %s, 20' % sC)
    I('s_cselect_b32 s%d, %s, 0' % (rST + 2, sB))
    I('s_cselect_b32 %s, %s, 0x%x' % (sCol, sCol, BIG))
    I('s_cselect_b32 %s, %s, 0' % (sA, sA))
    I('s_lshl_b32 %s, %s, 7' % (sA, sA))
    I('s_mul_i32 %s, %s, 56' % (sB, sW))
    I('v_lshrrev_b32 v12, 3, v%d' % vL)
    I('v_add_u32 v12, %s, v12' % sB)
    I('v_mul_u32_u24 v12, %s, v12' % sP8)
    I('v_and_b32 v13, 7, v%d' % vL)
    I('v_lshl_add_u32 v12, v13, 4, v12')
    I('v_add_u32 v%d, %s, v12' % (vSo, sA))
    I('s_lshl_b32 %s, %s, 3' % (sP8, sP8))
    if OPT['spos'] == 2:
        for d in strip_loads(sP8):
            d()
    late_setup()
    for d in wdma(1):
        d()
    hh, r3, c, gp = 12, 13, 14, 15
    lane_fields(hh, r3, c, gp)
    I('v_bfe_u32 v5, v%d, 1, 3' % vL)
    I('v_xor_b32 v5, v5, v%d' % hh)
    I('v_lshlrev_b32 v5, 4, v5')
    I('v_and_b32 v6, 31, v%d' % vL)
    I('v_lshl_add_u32 v5, v6, 7, v5')
    I('s_and_b32 %s, %s, 1' % (sA, sW))
    I('s_lshl_b32 %s, %s, 13' % (sA, sA))
    I('s_add_u32 %s, %s, %d' % (sA, sA, XB))
    I('v_add_u32 v5, %s, v5' % sA)
    I('v_lshl_add_u32 v9, v%d, 2, v%d' % (hh, r3))
    I('v_lshlrev_b32 v9, 7, v9')
    I('v_lshl_add_u32 v9, v%d, 11, v9' % gp)
    I('v_lshl_add_u32 v9, v%d, 3, v9' % c)
    I('v_and_b32 v7, 2, v%d' % r3)
    I('s_lshr_b32 %s, %s, 1' % (sA, sW))
    I('v_add3_u32 v7, v7, v%d, %s' % (gp, sA))
    I('v_and_b32 v7, 3, v7')
    I('v_lshl_add_u32 v9, v7, 5, v9')
    I('v_add_u32 v12, %d, v9' % (2 * WS_))
    for k in range(1, 4):
        I('v_xor_b32 v%d, %d, v5' % (5 + k, 32 * k))
    I('s_lshl_b32 %s, %s, 1' % (sB, sT))
    I('s_and_b32 %s, %s, 1' % (sC, sW))
    I('s_add_u32 %s, %s, %s' % (sB, sB, sC))
    I('s_mul_i32 %s, %s, %d' % (sHB, sB, 2 * 144))
    I('s_lshl_b32 %s, %s, 2' % (sB, sKO))
    I('s_add_u32 %s, %s, %s' % (sB, sB, sA))
    I('s_add_u32 %s, %s, %s' % (sHB, sHB, sB))
    I('s_lshl_b32 %s, %s, 10' % (sHB, sHB))
    I('s_lshl_b32 s%d, %s, 7' % (rPHI, sB))
    fill.add(*cons_setup(13))
    fill.add(*pr.setup(93, 94, 95))
    fill.flush()
    if OPT['pd'] < 0:
        pr.dma()
    stamp(4, 1)
    init_signal()
    stats_compute()
    stamp(5, 1)

    def reads(s, ks, b):
        hi = (s % 4) >> 1
        o = (s % 2) * WS_
        xo = ((s >> 1) & 1) * 16384
        f = FB[b]
        x = ['ds_read_b128 %s, v%d offset:%d' % (vr(f + 4 * ts, 4), vRX[2 * (s & 1) + ks], xo + 4096 * ts) for ts in range(2)]
        w = [['ds_read_b64_tr_b16 %s, v%d offset:%d' % (vr(f + 8 + 4 * u + 2 * sc, 2), vRW[hi],
                                                       o + 8192 * u + 4096 * ks + 1024 * sc) for sc in range(2)]
             for u in range(3)]
        return [[x[0]] + w[0], w[1] + [w[2][0]], [w[2][1], x[1]]]

    def mf(b, first=False):
        f = FB[b]
        return [mfma(ACC + 16 * (3 * ts + u), f + 8 + 4 * u, f + 4 * ts, '0' if first else None)
                for ts in range(2) for u in range(3)]

    def stcs_loads():
        t0, t1 = 118, 119
        I('v_and_b32 v%d, 31, v%d' % (t0, vL))
        I('v_lshlrev_b32 v%d, 4, v%d' % (t1, t0))
        I('s_lshl_b32 %s, %s, 1' % (sA, sT))
        I('s_and_b32 %s, %s, 1' % (sB, sW))
        I('s_add_u32 %s, %s, %s' % (sA, sA, sB))
        I('s_lshl_b32 %s, %s, 10' % (sA, sA))
        I('s_add_u32 %s, %s, 0x%x' % (sA, sA, WS_ST))
        for ts in range(2):
            I('buffer_load_dwordx4 %s, v%d, %s, %s offen offset:%d sc1' % (vr(STf[ts], 4), t1, srd(rWS), sA, 512 * ts))
        I('v_and_b32 v%d, 15, v%d' % (t1, vL))
        I('v_lshlrev_b32 v%d, 3, v%d' % (t1, t1))
        I('v_lshrrev_b32 v%d, 4, v%d' % (t0, vL))
        I('v_mul_u32_u24 v%d, %d, v%d' % (vDB, 1792 * 8, t0))
        I('v_add_u32 v%d, v%d, v%d' % (t1, t1, vDB))
        I('v_lshrrev_b32 v%d, 1, v%d' % (t0, t0))
        I('v_lshl_add_u32 v%d, v%d, 30, v%d' % (t1, t0, t1))
        I('s_add_u32 %s, s%d, 0x%x' % (sA, rPHI, WS_CS))
        for u in range(3):
            I('buffer_load_dwordx2 %s, v%d, %s, %s offen offset:%d sc1' % (vr(CSf + 4 * u, 2), t1, srd(rWS), sA, 512 * u))

    def stcs_test():
        t = CSf + 2
        I('v_min_u32 v%d, v%d, v%d' % (t, STf[0], STf[1]))
        I('v_min3_u32 v%d, v%d, v%d, v%d' % (t + 1, CSf + 1, CSf + 5, CSf + 9))
        I('v_cmp_ne_u32 s[%d:%d], 0, v%d' % (rST, rST + 1, t + 1))
        I('v_cmp_ne_u32 vcc, 0, v%d' % t)
        I('s_and_b32 vcc_lo, vcc_lo, s%d' % rST)
        I('s_cmp_eq_u64 vcc, -1')

    def stcs_check():
        spin_check(stcs_loads, stcs_test, 2)
        for r in [STf[0] + 4, STf[0] + 5, STf[1] + 4, STf[1] + 5] + [CSf + 4 * u + k for u in range(3) for k in (2, 3)]:
            fill.add('v_mov_b32 v%d, 0' % r)

    wplan, k = {}, 0
    for s in range(OPT['pw'] + 1, OPT['wend'] + 1):
        n = min(OPT['wn'], 20 - k) if s <= 10 else -(-(20 - k) // (OPT['wend'] + 1 - s))
        wplan[s] = list(range(k, k + n))
        k += n
    for s in range(14):
        if s == 3:
            fill.flush()
        if s == OPT['dchk'] - 1:
            dbg_issue()
        a.wait_tag(('st', s), lg=0)
        if s == 0:
            stamp(6, 1)
        I('s_barrier')
        stamp(7 + s, 1)
        if s in (0, 1, 4, 8, 12):
            stamp({0: 2, 1: 3, 4: 4, 8: 5, 12: 6}[s])
        d = (xdma(s // 2 + 1) if (s % 2 == 0 and 2 <= s <= 10) else []) + (wdma(s + 3) if s + 3 < 14 else [])
        X = [[] for _ in range(6)]
        for k, x in zip((0, 1, 3, 4) if len(d) == 4 else (0, 1, 2), d):
            X[k].append(x)
        free = [k for k in range(6) if not X[k]] + [k for k in range(6) if X[k]]
        if s == OPT['pd']:
            X[5].append(pr.dma)
        if s == OPT['ps']:
            X[0].insert(0, pr.read)
            X[3].append(pr.store)
        if s == OPT['pf']:
            X[OPT['pfs']].append(pr.flag)
        if s == OPT['pw']:
            X[2].append(wf_issue)
        if s == OPT['pw'] + 1:
            X[0].insert(0, lambda: spin_check(wf_issue, wf_test, 2))
        q = wplan.get(s, [])
        for k, slot_ in zip(q, sorted((free * 3)[:len(q)])):
            X[slot_].append(lambda k=k: wl.ld(k))
        if s == 3:
            X[2].append(lambda: strip_publish(sCol))
        if s == OPT['dchk'] - 1:
            X[5].append(dbg_check)
        if s == OPT['dchk']:
            X[2].append(stats_store)
        if s == OPT['fchk']:
            X[2] += [fill.flush, stcs_loads]
        if s == 0:
            for g in reads(0, 0, 0):
                for x in g:
                    I(x)
            st, rest = strip_loads(sP8), xdma(1) + wdma(2)
            q = {0: st + rest, 1: rest + st, 2: rest}[OPT['spos']] + d
            n0 = len(q) - 6
            for x in q[:n0]:
                x()
            side = reads(0, 1, 1) + [[], [], []]
            for k in range(6):
                side[k].append(q[n0 + k])
            side[5] += X[5]
            block(mf(0, True), side)
            strip_fill()
            continue
        nf = 6 if s in (1, 2) else None
        block(mf(1), reads(s, 0, 0) + X[:3], nf)
        block(mf(0), reads(s, 1, 1) + X[3:], nf)
    stamp(7)
    I('s_setprio 1')
    stamp(1, 2)
    block(mf(1), [[], [], [stcs_check, lambda: stamp(2, 2)], [], [], []])
    fill.flush()
    stamp(3, 2)
    for ts in range(2):
        for u in range(3):
            I(mfma(ACC + 16 * (3 * ts + u), CSf + 4 * u, STf[ts] + 2))
    if OPT['fe']:
        wl.steps(13, 14, 15, 16, 17)
    for ts in range(2):
        I('v_mul_f32 v%d, %s, v%d' % (STf[ts], f32(HS), STf[ts] + 1))
        I('v_mul_f32 v%d, %s, v%d' % (STf[ts] + 1, f32(HS), STf[ts] + 1))
    for ts in range(2):
        I('s_add_u32 %s, %s, %d' % (sA, sHB, 144 * 1024 * ts))
        for u in range(3):
            if u:
                I('s_add_u32 %s, %s, 4096' % (sA, sA))
            ffn_tile(ACC + 16 * (3 * ts + u), STf[ts], ACC + 16 * (3 * ts + u), sA, 0)
            stamp(4 + 3 * ts + u, 2)
    I('s_setprio 0')
    stamp(8)
    rest = [10, 11, 12] + ([] if OPT['fe'] else [13, 14, 15, 16, 17])
    p2_setup()
    wl.steps(*rest[:OPT['fpre']])
    a.wait_tag('h')
    flag_store(1)
    stamp(9)
    wl.steps(*rest[OPT['fpre']:])
    h_poll()
    a.wait(vm=0)
    stamp(10)
    I('s_branch L_H')


slow_blocks = []


def exps(P, En, lab):
    M = En
    I('v_max3_f32 v%d, |v%d|, |v%d|, |v%d|' % (M, P, P + 1, P + 2))
    I('v_max3_f32 v%d, |v%d|, |v%d|, |v%d|' % (M + 1, P + 3, P + 4, P + 5))
    for i in range(6, 16, 4):
        I('v_max3_f32 v%d, |v%d|, |v%d|, v%d' % (M, P + i, P + i + 1, M))
        if i + 3 < 16:
            I('v_max3_f32 v%d, |v%d|, |v%d|, v%d' % (M + 1, P + i + 2, P + i + 3, M + 1))
    I('v_max_f32 v%d, v%d, v%d' % (M, M, M + 1))
    I('v_cmp_nle_f32 vcc, v%d, %s' % (M, sCnt))
    I('s_cbranch_vccnz %s_S' % lab)
    for i in range(16):
        I('v_exp_f32 v%d, -v%d' % (En + i, P + i))
        I('v_exp_f32 v%d, v%d' % (P + i, P + i))
    a.label(lab + '_R')
    a.flush_hazards(1)
    slow_blocks.append((P, En, lab))


def emit_slow(P, En, lab, pre=()):
    M, m, M2, m2 = 12, 13, 14, 15
    a.label(lab + '_S')
    a.auto = False
    a.raw('    s_waitcnt lgkmcnt(0)')
    a.flush_hazards(16)
    for x in pre:
        I(x)
    I('v_max3_f32 v%d, v%d, v%d, v%d' % (M, P, P + 1, P + 2))
    I('v_min3_f32 v%d, v%d, v%d, v%d' % (m, P, P + 1, P + 2))
    for i in range(3, 11, 2):
        I('v_max3_f32 v%d, v%d, v%d, v%d' % (M, M, P + i, P + i + 1))
        I('v_min3_f32 v%d, v%d, v%d, v%d' % (m, m, P + i, P + i + 1))
    I('v_max_f32 v%d, v%d, v%d' % (M, M, P + 11))
    I('v_min_f32 v%d, v%d, v%d' % (m, m, P + 11))
    I('s_mov_b32 exec_hi, 0')
    for i in (12, 14):
        I('v_max3_f32 v%d, v%d, v%d, v%d' % (M, M, P + i, P + i + 1))
        I('v_min3_f32 v%d, v%d, v%d, v%d' % (m, m, P + i, P + i + 1))
    I('s_mov_b32 exec_hi, -1')
    I('v_mov_b32 v%d, v%d' % (M2, M))
    I('v_mov_b32 v%d, v%d' % (m2, m))
    I('v_permlane32_swap_b32 v%d, v%d' % (M, M2))
    I('v_permlane32_swap_b32 v%d, v%d' % (m, m2))
    I('v_max_f32 v%d, v%d, v%d' % (M, M, M2))
    I('v_min_f32 v%d, v%d, v%d' % (m, m, m2))
    for i in range(16):
        I('v_sub_f32 v%d, v%d, v%d' % (En + i, m, P + i))
        I('v_sub_f32 v%d, v%d, v%d' % (P + i, P + i, M))
    for i in range(16):
        I('v_exp_f32 v%d, v%d' % (En + i, En + i))
        I('v_exp_f32 v%d, v%d' % (P + i, P + i))
    I('s_mov_b32 exec_lo, 0')
    for i in range(12, 16):
        I('v_mov_b32 v%d, 0' % (P + i))
        I('v_mov_b32 v%d, 0' % (En + i))
    I('s_mov_b32 exec_lo, -1')
    I('s_branch %s_R' % lab)
    a.auto = True


def path_A():
    SL = 49152
    vX0, vX1, vQo, vGo = 2, 3, 4, 5
    vRX, vRQ, vRG = [6, 7, 8, 9], 16, 17
    FB = [120, 140]
    aK, aV, aQ, aF = 192, 208, 224, 240
    STf, CSf = 96, 102
    WF, ON = 20, 28
    AD = 34
    wl = W2L()
    wf_issue, wf_test = wf_poll(19, 18)
    KA = [38, 118]
    a.label('L_A')
    a.forget()
    x_offsets(vX0, vX1)
    I('s_lshl_b32 %s, %s, 3' % (sA, sW))
    I('v_add_u32 v13, %s, v12' % sA)
    I('v_mul_u32_u24 v13, 2688, v13')
    I('v_and_b32 v14, 1, v14')
    I('v_lshlrev_b32 v14, 2, v14')
    I('v_xor_b32 v14, v14, v15')
    I('v_lshl_add_u32 v13, v14, 4, v13')
    I('s_lshl_b32 %s, %s, 1' % (sA, sG))
    I('s_add_u32 %s, %s, %s' % (sA, sA, sTY))
    I('s_sub_u32 %s, %s, 2' % (sKO, sA))
    I('s_mul_i32 %s, %s, 112' % (sA, sKO))
    I('v_add_u32 v13, %s, v13' % sA)
    I('v_mov_b32 v12, 0x%x' % BIG)
    I('v_cmp_eq_u32 vcc, 7, v14')
    I('v_cndmask_b32 v%d, v13, v12, vcc' % vQo)
    I('s_lshr_b32 %s, %s, 2' % (sA, sW))
    I('s_lshl_b32 %s, %s, 1' % (sA, sA))
    I('s_and_b32 %s, %s, 1' % (sB, sW))
    I('s_add_u32 %s, %s, %s' % (sA, sA, sB))
    I('s_and_b32 %s, %s, 2' % (sB, sW))
    I('s_lshl_b32 %s, %s, 1' % (sC, sB))
    I('s_add_u32 %s, %s, %s' % (sC, sC, sA))
    sGU = 's%d' % (rWD + 2)
    I('s_lshl_b32 %s, %s, 10' % (sGU, sC))
    I('s_lshl_b32 %s, %s, 4' % (sA, sA))
    I('v_lshrrev_b32 v12, 2, v%d' % vL)
    I('v_add_u32 v12, %s, v12' % sA)
    I('v_mul_u32_u24 v12, 3584, v12')
    I('v_and_b32 v13, 3, v%d' % vL)
    I('v_xor_b32 v13, %s, v13' % sB)
    I('v_lshl_add_u32 v12, v13, 4, v12')
    I('s_mul_i32 %s, %s, 896' % (sA, sG))
    I('s_lshl_b32 %s, %s, 6' % (sB, sTY))
    I('s_add_u32 %s, %s, %s' % (sA, sA, sB))
    I('s_add_u32 %s, %s, %d' % (sA, sA, 768 - 128))
    I('v_add_u32 v%d, %s, v12' % (vGo, sA))
    sCa = 's%d' % (rST + 2)
    I('s_mov_b32 %s, %s' % (sCa, sCh))

    def slot(s):
        return (s % 3) * SL

    def dmas(s):
        sl = slot(s)

        def x0():
            I('s_lshl_b32 %s, %s, 1' % (sD, sMB))
            I('s_add_u32 m0, %s, %d' % (sD, sl))
            I('s_lshl_b32 %s, %s, 7' % (sD, sCa))
            I('buffer_load_dwordx4 v%d, %s, %s offen lds' % (vX0, srd(rX), sD), tag=('st', s))

        def x1():
            I('buffer_load_dwordx4 v%d, %s, %s offen offset:1024 lds' % (vX1, srd(rX), sD), tag=('st', s))
            I('s_mul_i32 %s, %s, %d' % (sE, sCa, 64 * 2688))

        def q(area, io):
            def f():
                I('s_add_u32 m0, %s, %d' % (sMB, sl + area - io))
                I('buffer_load_dwordx4 v%d, %s, %s offen offset:%d lds' % (vQo, srd(rQKV), sE, io), tag=('st', s))
            return f

        def gu():
            I('s_add_u32 m0, %s, %d' % (sGU, sl + 40960))
            I('s_mul_i32 %s, %s, %d' % (sD, sCa, 64 * 3584))
            I('buffer_load_dwordx4 v%d, %s, %s offen lds' % (vGo, srd(rGU), sD), tag=('st', s))
            wrap_inc(sCa, 7)
        return [x0, x1, q(16384, 896), q(24576, 1792), q(32768, 0), gu]

    stamp(1, 1)
    a.raw('    s_waitcnt lgkmcnt(0)')
    stamp(2, 1)
    stats_issue()
    for d in dmas(0):
        d()
    stamp(3, 1)
    stamp(1)

    def wphi_dma():
        I('s_add_u32 m0, %s, %d' % (sMB, WPH))
        I('s_mul_i32 %s, %s, 3136' % (sD, sKO))
        I('s_add_u32 %s, %s, %s' % (sD, sD, sMB))
        I('buffer_load_dwordx4 v%d, %s, %s offen lds' % (vHo, srd(rPHI), sD), tag=('st', 2))
        I('s_mov_b32 %s, %s' % (sPair, sKO))
    sHo, sPair = 's%d' % rPHI, 's%d' % (rPHI + 1)
    late_setup()
    hh, r3, c, gp = 12, 13, 14, 15
    lane_fields(hh, r3, c, gp)
    I('v_bfe_u32 v6, v%d, 1, 3' % vL)
    I('v_xor_b32 v6, v6, v%d' % hh)
    I('v_lshlrev_b32 v6, 4, v6')
    I('v_and_b32 v7, 31, v%d' % vL)
    I('v_lshl_add_u32 v6, v7, 7, v6')
    I('s_and_b32 %s, %s, 3' % (sA, sW))
    I('s_lshl_b32 %s, %s, 12' % (sB, sA))
    I('v_add_u32 v6, %s, v6' % sB)
    for k in range(1, 4):
        I('v_xor_b32 v%d, %d, v6' % (6 + k, 32 * k))
    I('s_lshr_b32 %s, %s, 2' % (sB, sW))
    I('v_lshl_add_u32 v18, v%d, 3, v%d' % (hh, r3))
    I('v_lshlrev_b32 v19, 3, v%d' % c)
    I('v_lshl_add_u32 v%d, v18, 6, v19' % vRG)
    I('v_lshl_add_u32 v%d, v%d, 12, v%d' % (vRG, gp, vRG))
    I('v_xor_b32 v%d, %s, v%d' % (vRQ, sB, gp))
    I('v_lshl_add_u32 v%d, v%d, 5, v%d' % (vRG, vRQ, vRG))
    I('v_lshl_add_u32 v19, v%d, 5, v19' % gp)
    I('v_lshrrev_b32 v%d, 1, v%d' % (vRQ, r3))
    I('v_lshl_add_u32 v19, v%d, 6, v19' % vRQ)
    I('s_mul_i32 %s, %s, 56' % (sC, sB))
    I('v_add_u32 v19, %s, v19' % sC)
    I('v_and_b32 v19, 127, v19')
    I('v_lshl_add_u32 v%d, v18, 7, v19' % vRQ)
    I('v_lshl_add_u32 v18, v%d, 2, v%d' % (hh, r3))
    I('v_mul_u32_u24 v18, 56, v18')
    I('v_lshl_add_u32 v18, v%d, 3, v18' % c)
    I('v_lshl_add_u32 v18, v%d, 5, v18' % gp)
    I('s_mul_i32 %s, %s, 1568' % (sC, sB))
    I('s_add_u32 %s, %s, %d' % (sC, sC, WPH))
    I('v_add_u32 v18, %s, v18' % sC)
    I('s_lshl_b32 %s, %s, 2' % (sC, sT))
    I('s_add_u32 %s, %s, %s' % (sC, sC, sA))
    I('s_mul_i32 %s, %s, %d' % (sHB, sC, 144 * 1024))
    stamp(4, 1)
    stats_compute()
    for d in dmas(1):
        d()
    stamp(5, 1)

    def reads(ks, b):
        f = FB[b]
        x = 'ds_read_b128 %s, v%d' % (vr(f, 4), vRX[ks])
        t = [['ds_read_b64_tr_b16 %s, v%d offset:%d' % (vr(f + 4 + 4 * n + 2 * sc, 2), vRQ, 16384 + 8192 * n + 2048 * ks + 512 * sc)
              for sc in range(2)] for n in range(3)]
        t.append(['ds_read_b64_tr_b16 %s, v%d offset:%d' % (vr(f + 16 + 2 * sc, 2), vRG, 40960 + 1024 * ks + 256 * sc)
                  for sc in range(2)])
        return [[x] + t[0] + t[1][:1], t[1][1:] + t[2], t[3], []]

    def mf(b, first=False):
        f = FB[b]
        return [mfma(aK + 16 * n, f + 4 + 4 * n, f, '0' if first else None) for n in range(4)]

    def adv(s):
        d = slot(s + 1) - slot(s)
        return ['v_add_u32 v%d, %d, v%d' % (r, d, r) for r in vRX + [vRQ, vRG]]

    def wphi_load():
        for q in range(4):
            I('ds_read_b64_tr_b16 %s, v18 offset:%d' % (vr(WF + 2 * q, 2), 448 * q))
        for k in range(6):
            fill.add('v_mov_b32 v%d, 0x3f803f80' % (ON + k))
        fill.add(['s_mov_b32 exec_lo, 0'] + ['v_mov_b32 v%d, 0' % r for r in (WF + 6, WF + 7, ON + 4, ON + 5)]
                 + ['s_mov_b32 exec_lo, 0xf0000000', 's_mov_b32 exec_hi, 0xf0000000']
                 + ['v_mov_b32 v%d, 0' % (WF + k) for k in range(8)] + ['s_mov_b64 exec, -1'])
        fill.add('v_and_b32 v160, 31, v%d' % vL, 's_and_b32 %s, %s, 3' % (sA, sW), 's_lshl_b32 %s, %s, 5' % (sA, sA),
                 'v_lshrrev_b32 v161, 2, v160', 'v_add_u32 v160, %s, v160' % sA, 'v_mul_u32_u24 v160, 320, v160',
                 'v_lshrrev_b32 v162, 5, v%d' % vL, 'v_xor_b32 v161, v161, v162',
                 's_lshr_b32 %s, %s, 2' % (sA, sW), 's_mul_i32 %s, %s, 40960' % (sA, sA),
                 's_add_u32 %s, %s, %d' % (sA, sA, SL), 'v_lshl_add_u32 v160, v161, 3, v160',
                 'v_add_u32 v%d, %s, v160' % (AD, sA))
        for j in range(1, 4):
            fill.add('v_xor_b32 v%d, %d, v%d' % (AD + j, 16 * j, AD))
        k0, k1 = KA
        fill.add('v_lshrrev_b32 v160, 5, v%d' % vL, 'v_bfe_u32 v161, v%d, 2, 2' % vL,
                 'v_lshl_add_u32 v161, v160, 3, v161', 'v_mul_u32_u24 v%d, 320, v161' % k0,
                 'v_and_b32 v161, 3, v%d' % vL, 'v_bfe_u32 v162, v%d, 4, 1' % vL,
                 'v_lshl_add_u32 v161, v162, 2, v161', 'v_lshlrev_b32 v160, 1, v160', 'v_xor_b32 v161, v161, v160',
                 'v_lshl_add_u32 v%d, v161, 3, v%d' % (k0, k0),
                 's_lshr_b32 %s, %s, 1' % (sA, sW), 's_mul_i32 %s, %s, 40960' % (sA, sA),
                 's_and_b32 %s, %s, 1' % (sB, sW), 's_lshl_b32 %s, %s, 6' % (sB, sB),
                 's_add_u32 %s, %s, %s' % (sA, sA, sB), 's_add_u32 %s, %s, %d' % (sA, sA, SL),
                 'v_add_u32 v%d, %s, v%d' % (k0, sA, k0), 'v_xor_b32 v%d, 8, v%d' % (k0 + 1, k0),
                 'v_add_u32 v%d, %d, v%d' % (k0 + 1, 4 * 320, k0 + 1),
                 'v_xor_b32 v%d, 32, v%d' % (k1, k0), 'v_xor_b32 v%d, 32, v%d' % (k1 + 1, k0 + 1))

    def stcs_loads():
        t0, t1 = 160, 161
        I('v_and_b32 v%d, 31, v%d' % (t0, vL))
        I('v_lshlrev_b32 v%d, 4, v%d' % (t1, t0))
        I('s_lshl_b32 %s, %s, 2' % (sA, sT))
        I('s_and_b32 %s, %s, 3' % (sB, sW))
        I('s_add_u32 %s, %s, %s' % (sA, sA, sB))
        I('s_lshl_b32 %s, %s, 9' % (sA, sA))
        I('s_add_u32 %s, %s, 0x%x' % (sA, sA, WS_ST))
        I('buffer_load_dwordx4 %s, v%d, %s, %s offen sc1' % (vr(STf, 4), t1, srd(rWS), sA))
        I('v_lshlrev_b32 v%d, 3, v%d' % (t1, vL))
        I('v_mov_b32 v%d, 0x%x' % (t0, BIG))
        I('v_cmp_gt_u32 vcc, 28, v%d' % vL)
        I('v_cndmask_b32 v%d, v%d, v%d, vcc' % (t1, t0, t1))
        I('s_lshr_b32 %s, %s, 2' % (sB, sW))
        I('s_lshl_b32 %s, %s, 1' % (sA, sPair))
        I('s_add_u32 %s, %s, %s' % (sA, sA, sB))
        I('s_mul_i32 %s, %s, 224' % (sA, sA))
        I('s_add_u32 %s, %s, 0x%x' % (sA, sA, WS_CS + 3584 * 8))
        I('s_add_u32 %s, %s, %d' % (sC, sA, 3584))
        I('buffer_load_dwordx2 %s, v%d, %s, %s offen sc1' % (vr(CSf, 2), t1, srd(rWS), sC))
        I('buffer_load_dwordx2 %s, v%d, %s, %s offen offset:3584 sc1' % (vr(CSf + 4, 2), t1, srd(rWS), sC))
        I('buffer_load_dwordx2 %s, v%d, %s, %s offen sc1' % (vr(CSf + 8, 2), t1, srd(rWS), sA))
        I('v_and_b32 v%d, 15, v%d' % (t1, vL))
        I('v_lshlrev_b32 v%d, 3, v%d' % (t1, t1))
        I('v_lshrrev_b32 v%d, 4, v%d' % (t0, vL))
        I('v_mul_u32_u24 v%d, %d, v%d' % (vDB, 1792 * 8, t0))
        I('v_add_u32 v%d, v%d, v%d' % (t1, t1, vDB))
        I('v_lshrrev_b32 v%d, 1, v%d' % (t0, t0))
        I('v_lshl_add_u32 v%d, v%d, 30, v%d' % (t1, t0, t1))
        I('s_mul_i32 %s, %s, 28' % (sA, sG))
        I('s_lshl_b32 %s, %s, 1' % (sC, sTY))
        I('s_add_u32 %s, %s, %s' % (sA, sA, sC))
        I('s_add_u32 %s, %s, %s' % (sA, sA, sB))
        I('s_add_u32 %s, %s, 20' % (sA, sA))
        I('s_lshl_b32 s%d, %s, 10' % (rPHI, sA))
        I('s_add_u32 s%d, s%d, %s' % (rPHI, rPHI, sHB))
        I('s_lshl_b32 %s, %s, 7' % (sA, sA))
        I('s_add_u32 %s, %s, 0x%x' % (sA, sA, WS_CS))
        I('buffer_load_dwordx2 %s, v%d, %s, %s offen sc1' % (vr(CSf + 12, 2), t1, srd(rWS), sA))

    def stcs_test():
        t = CSf + 2
        I('v_min3_u32 v%d, v%d, v%d, v%d' % (t, CSf + 1, CSf + 5, CSf + 9))
        I('v_cmp_ne_u32 s[%d:%d], 0, v%d' % (rST, rST + 1, t))
        I('v_cmp_ne_u32 s[%d:%d], 0, v%d' % (rST + 2, rST + 3, CSf + 13))
        I('v_cmp_ne_u32 vcc, 0, v%d' % STf)
        I('s_or_b32 s%d, s%d, 0xf0000000' % (rST, rST))
        I('s_and_b32 vcc_lo, vcc_lo, s%d' % rST)
        I('s_and_b32 vcc_lo, vcc_lo, s%d' % (rST + 2))
        I('s_cmp_eq_u64 vcc, -1')

    def stcs_check():
        spin_check(stcs_loads, stcs_test, 2)
        for r in [STf + 4, STf + 5] + [CSf + 4 * u + k for u in range(4) for k in (2, 3)]:
            fill.add('v_mov_b32 v%d, 0' % r)

    early = list(range(6, 20)) if OPT['aearly'] else []

    def early_gate():
        wf_test()
        I('s_cselect_b32 s%d, 0x%x, 0' % (rWO + 2, WS_SIZE))
        I('s_cmp_ge_u32 s2, 224')
        I('s_cselect_b32 s%d, 0, s%d' % (rWO + 2, rWO + 2))

    for s in range(7):
        if s == OPT['dchk'] - 1:
            dbg_issue()
        a.wait_tag(('st', s), lg=0)
        stamp(6 + 2 * s, 1)
        I('s_barrier')
        stamp(7 + 2 * s, 1)
        if s in (0, 1, 2, 4, 6):
            stamp({0: 2, 1: 3, 2: 4, 4: 5, 6: 6}[s])
        d = dmas(s + 2) if s + 2 < 7 else [None] * 6
        for p in range(4):
            side = reads(p, p & 1)
            if p < 3:
                side[2].append(d[2 * p])
                side[3].append(d[2 * p + 1])
            elif s < 6:
                side[3] += adv(s)
            side = [[x for x in g if x] for g in side]
            if s == 0 and p == 3:
                side[3].append(wphi_dma)
            if s == 2 and p == 2:
                side[3].append(wphi_load)
            if s == OPT['dchk'] - 1 and p == 3:
                side[3].append(dbg_check)
            if s == OPT['dchk'] and p == 0:
                side[3].append(stats_store)
            if s == OPT['achk'] and p == OPT['achkp']:
                side[1] += [fill.flush, stcs_loads]
            if s == 3 and p == 0:
                fill.add(*cons_setup(19))
            q = 4 * s + p
            if q == OPT['apw']:
                side[3] += [fill.flush, wf_issue]
            if q == OPT['apw'] + 3:
                side[0].append(early_gate)
            if q >= OPT['apw'] + 3:
                n = -(-len(early) // (28 - q))
                for k in range(n):
                    side[(1 + k) % 4].append(lambda k=early.pop(0): wl.ld(k))
            if s == 0 and p == 0:
                for g in side:
                    for x in g:
                        x() if callable(x) else I(x)
                fill.pop(24)
            else:
                block(mf(1 - (p & 1), s == 0 and p == 1), side, 7 if s == 0 else None)
    stamp(7)
    stamp(1, 2)
    block(mf(1), [[stcs_check, lambda: stamp(2, 2)]])
    fill.flush()
    stamp(3, 2)
    P, En, SP, SN = 120, 136, 160, 176
    vC = 158
    for n in range(4):
        I(mfma(aK + 16 * n, CSf + 4 * n, STf + 2))
    I('v_mul_f32 v%d, %s, v%d' % (vC, f32(LOG2E), STf))
    I('v_mul_f32 v%d, %s, v%d' % (vC + 1, f32(LOG2E), STf))
    I('s_mov_b32 %s, %s' % (sCnt, f32(60.0)))
    for i in range(0, 16, 2):
        I('v_pk_mul_f32 %s, %s, %s' % (vr(aK + i, 2), vr(aK + i, 2), vr(vC, 2)))
    pack8(aK, aK)
    I(mfma(P, WF, aK, '0'))
    I(mfma(P, WF + 4, aK + 4))
    I('s_mov_b32 %s, %s' % (sA, f32(2.0 ** 60)))
    stamp(4, 2)
    for i in range(16):
        I('v_exp_f32 v%d, -v%d' % (En + i, P + i))
        I('v_exp_f32 v%d, v%d' % (P + i, P + i))
    a.label('XK_R')
    a.flush_hazards(1)
    slow_blocks.append((P, En, 'XK', [mfma(P, WF, aK, '0'), mfma(P, WF + 4, aK + 4)]))
    stamp(5, 2)
    pack8(P, P)
    I(mfma(SP, ON, P, '0'))
    I(mfma(SP, ON + 2, P + 4))
    pack8(En, En)
    I(mfma(SN, ON, En, '0'))
    I(mfma(SN, ON + 2, En + 4))
    for j in range(4):
        I('ds_write_b64 v%d, %s' % (AD + j, vr(P + 2 * j, 2)))
        I('ds_write_b64 v%d, %s offset:64' % (AD + j, vr(En + 2 * j, 2)))
    for S_, sc, sp, off in ((SP, 152, 154, 128), (SN, 153, 156, 192)):
        stamp(6 + (S_ == SN), 2)
        I('v_rcp_f32 v%d, v%d' % (sc, S_))
        I('v_cmp_lt_f32 vcc, %s, v%d' % (sA, S_))
        I('s_cbranch_vccnz XK_S')
        I('v_mul_f32 v%d, v%d, v%d' % (sp, sc, STf))
        I('v_mul_f32 v%d, v%d, v%d' % (sp + 1, sc, STf))
        for i in range(0, 16, 2):
            I('v_pk_mul_f32 %s, %s, %s' % (vr(S_ + i, 2), vr(aV + i, 2), vr(sp, 2)))
        pack8(S_, S_)
        I('s_mov_b32 exec_lo, 0')
        I('v_cvt_pk_bf16_f32 v%d, v%d, 0' % (S_ + 6, sc))
        I('v_mov_b32 v%d, 0' % (S_ + 7))
        I('s_mov_b32 exec_lo, -1')
        for j in range(4):
            I('ds_write_b64 v%d, %s offset:%d' % (AD + j, vr(S_ + 2 * j, 2), off))
    stamp(8, 2)
    a.wait(lg=0)
    stamp(9, 2)
    I('s_barrier')
    stamp(8)
    stamp(10, 2)
    I('s_and_b32 %s, %s, 3' % (sB, sW))
    I('s_lshl2_add_u32 %s, %s, %s' % (sE, sPair, sB))
    I('s_cmp_ge_u32 %s, 4' % sW)
    with a.skip_if('s_cbranch_scc1'):
        I('s_setprio 2')
        FR, KVA = 120, aK
        for i in range(8):
            f = FR + 8 * i
            ad = KA[i & 1]
            for sc in range(2):
                I('ds_read_b64_tr_b16 %s, v%d offset:%d' % (vr(f + 2 * sc, 2), ad + sc, 5120 * i))
            for sc in range(2):
                I('ds_read_b64_tr_b16 %s, v%d offset:%d' % (vr(f + 4 + 2 * sc, 2), ad + sc, 5120 * i + 128))
            if i >= 2:
                k = i - 2
                I(mfma(KVA + 16 * (k & 1), FR + 8 * k, FR + 8 * k + 4, '0' if k < 2 else None))
        for k in (6, 7):
            I(mfma(KVA + 16 * (k & 1), FR + 8 * k, FR + 8 * k + 4))
        stamp(11, 2)
        I('s_lshl_b32 %s, %s, 12' % (sA, sE))
        I('s_add_u32 %s, %s, 0x%x' % (sA, sA, WS_KV))
        I('v_lshlrev_b32 v2, 2, v%d' % vL)
        I('s_mov_b32 exec_lo, 0x1fffffff')
        I('s_mov_b32 exec_hi, 0x1fffffff')
        for r in range(16):
            if r % 2 == 0:
                I('v_pk_add_f32 %s, %s, %s' % (vr(KVA + r, 2), vr(KVA + r, 2), vr(KVA + 16 + r, 2)))
            if r == 12:
                I('s_mov_b32 exec_hi, 0')
            I('buffer_atomic_add_f32 v%d, v2, %s, %s offen offset:%d sc1' % (KVA + r, srd(rWS), sA, 256 * r), tag='kv')
        I('s_mov_b64 exec, -1')
        I('s_setprio 0')
    stamp(9)
    stamp(12, 2)
    I('s_cmp_lg_u32 s%d, 0' % (rWO + 2)) if OPT['aearly'] else I('s_cmp_eq_u32 0, 1')
    with a.skip_if('s_cbranch_scc1'):
        wf_issue()
        spin_check(wf_issue, wf_test, 2)
        I('s_mov_b32 %s, %s' % (sCnt, f32(60.0)))
        I('s_cmp_ge_u32 s2, 224')
        I('s_cselect_b32 s%d, 0, 0x%x' % (rWO + 2, WS_SIZE))
        wl.cur = None
        wl.steps(*range(3, 10))
    I('s_cmp_lt_u32 %s, 4' % sW)
    with a.skip_if('s_cbranch_scc1'):
        wl.cur = None
        wl.steps(13, 14, 15, 16, 17)
    I('v_mul_f32 v2, %s, v%d' % (f32(LOG2E), STf))
    I('v_mul_f32 v3, %s, v%d' % (f32(LOG2E), STf))
    for i in range(0, 16, 2):
        I('v_pk_mul_f32 %s, %s, %s' % (vr(aQ + i, 2), vr(aQ + i, 2), vr(2, 2)))
    I('v_mul_f32 v2, %s, v%d' % (f32(HS), STf + 1))
    I('v_mul_f32 v3, %s, v%d' % (f32(HS), STf + 1))
    pack8(aQ, aQ)
    ffn_tile(aF, 2, 176, sHo, 0)
    PQ, EQ = aF, 160
    I(mfma(PQ, WF, aQ, '0'))
    I(mfma(PQ, WF + 4, aQ + 4))
    stamp(13, 2)
    exps(PQ, EQ, 'XQ')
    stamp(14, 2)
    vKP, vKV = 4, 0
    I('s_lshl_b32 %s, %s, 7' % (sA, sE))
    I('s_add_u32 %s, %s, 0x%x' % (sA, sA, WS_KF))
    I('s_cmp_ge_u32 %s, 4' % sW)
    with a.skip_if('s_cbranch_scc1'):
        I('s_lshl2_add_u32 %s, %s, %s' % (sB, sT, sA))
        I('v_mov_b32 v%d, %s' % (vKP, sB))
        I('v_mov_b32 v9, 1')
        a.wait_tag('kv')
        I('s_mov_b64 exec, 1')
        I('buffer_store_dword v9, v%d, %s, 0 offen sc1' % (vKP, srd(rWS)))
        I('s_mov_b64 exec, -1')
    stamp(10)
    stamp(15, 2)
    pack8(aQ, PQ)
    pack8(aQ + 8, EQ)
    I('v_and_b32 v2, 15, v%d' % vL)
    I('v_lshl_add_u32 v2, v2, 2, %s' % sA)
    vKP = 2
    a.wait_tag('h')
    flag_store(1)
    p2_setup()

    def kv_issue():
        I('buffer_load_dword v%d, v%d, %s, 0 offen sc1' % (vKV, vKP, srd(rWS)))

    def kv_test():
        I('v_cmp_ne_u32 vcc, 0, v%d' % vKV)
        I('s_cmp_eq_u64 vcc, -1')
    KVL = 32768
    I('s_cmp_lt_u32 %s, 4' % sW)
    with a.skip_if('s_cbranch_scc1'):
        kv_issue()
        I('s_lshl_b32 %s, %s, 2' % (sA, sMB))
        I('s_add_u32 m0, %s, %d' % (sA, KVL - 16384))
        I('s_lshl_b32 %s, %s, 12' % (sA, sE))
        I('s_add_u32 %s, %s, 0x%x' % (sA, sA, WS_KV))
        spin_check(kv_issue, kv_test)
        stamp(11)
        for q in range(4):
            I('buffer_load_dwordx4 v%d, %s, %s offen offset:%d sc1 lds' % (vHo, srd(rWS), sA, 1024 * q), tag='kvl')
    wl.cur = None
    wl.steps(0, 1, 2, 10, 11, 12)
    I('s_cmp_ge_u32 %s, 4' % sW)
    with a.skip_if('s_cbranch_scc1'):
        wl.cur = None
        wl.steps(13, 14, 15, 16, 17)
    KR, KF, OP, ON_ = 160, 240, 192, 208
    I('s_lshr_b32 %s, %s, 2' % (sA, sW))
    I('s_lshl_b32 %s, %s, 13' % (sB, sA))
    I('s_add_u32 %s, %s, %d' % (sB, sB, KVL))
    I('v_lshl_add_u32 v2, v%d, 2, %s' % (vL, sB))
    I('s_lshl_b32 %s, %s, 1' % (sB, sPair))
    I('s_add_u32 %s, %s, %s' % (sA, sA, sB))
    I('s_lshl_b32 %s, %s, 11' % (sA, sA))
    I('s_add_u32 %s, %s, %s' % (sA, sA, sHB))
    I('s_add_u32 %s, %s, %d' % (sHo, sA, 112 * 1024))
    for i in range(16):
        I('v_mov_b32 v%d, 0x3f803f80' % (KF + i))
    I('s_cmp_lt_u32 %s, 4' % sW)
    with a.skip_if('s_cbranch_scc1'):
        a.wait_tag('kvl')
    I('s_barrier')
    stamp(12)
    for r in range(0, 32, 2):
        I('ds_read2st64_b32 %s, v2 offset0:%d offset1:%d' % (vr(KR + r, 2), r, r + 1))
    I('s_mov_b32 exec_lo, 0xdfffffff')
    for q in range(4):
        for i in range(4 * q, 4 * q + 4):
            if i % 8 == 0:
                I('s_mov_b32 exec_hi, 0xdfffffff')
            if i % 8 == 6:
                I('s_mov_b32 exec_hi, -1')
            I('v_cvt_pk_bf16_f32 v%d, v%d, v%d' % (KF + i, KR + 2 * i, KR + 2 * i + 1))
    I('s_mov_b32 exec_lo, -1')
    for q in range(4):
        I(mfma(OP + 16 * (q >> 1), KF + 4 * q, aQ + 4 * q, None if q & 1 else '0'))
    t = KR
    I('v_rcp_f32 v%d, v%d' % (t, OP + 13))
    I('v_rcp_f32 v%d, v%d' % (t + 1, ON_ + 13))
    I('v_mul_f32 v%d, v%d, v%d' % (t + 2, OP + 12, t))
    I('v_fma_f32 v%d, v%d, v%d, v%d' % (t + 2, ON_ + 12, t + 1, t + 2))
    I('v_add_f32 v%d, %s, v%d' % (t + 2, f32(1e-6), t + 2))
    I('v_mul_f32 v%d, %s, v%d' % (t + 2, f32(1.0 / HS), t + 2))
    I('v_rcp_f32 v%d, v%d' % (t + 2, t + 2))
    I('v_mul_f32 v%d, v%d, v%d' % (t, t, t + 2))
    I('v_mul_f32 v%d, v%d, v%d' % (t + 1, t + 1, t + 2))
    I('v_mov_b32 v%d, v%d' % (t + 2, t))
    I('v_mov_b32 v%d, v%d' % (t + 3, t + 1))
    I('v_permlane32_swap_b32 v%d, v%d' % (t + 2, t))
    I('v_permlane32_swap_b32 v%d, v%d' % (t + 3, t + 1))
    I('v_mov_b32 v%d, v%d' % (t + 2, t + 1))
    I('v_mov_b32 v%d, v%d' % (t + 3, t + 1))
    I('v_mov_b32 v%d, v%d' % (t + 1, t))
    for i in range(0, 16, 2):
        I('v_pk_mul_f32 %s, %s, %s' % (vr(OP + i, 2), vr(OP + i, 2), vr(t, 2)))
    for i in range(0, 16, 2):
        I('v_pk_fma_f32 %s, %s, %s, %s' % (vr(OP + i, 2), vr(ON_ + i, 2), vr(t + 2, 2), vr(OP + i, 2)))
    pack8(KR + 8, OP)
    for q in range(2):
        I('buffer_store_dwordx4 %s, v%d, %s, %s offen offset:%d sc1' % (vr(KR + 8 + 4 * q, 4), vHo, srd(rWS), sHo, 1024 * q), tag='o')
    stamp(13)
    h_poll()
    a.wait_tag('o')
    flag_store(2)
    stamp(14)
    I('s_cmp_lt_u32 s2, 224')
    with a.skip_if('s_cbranch_scc1'):
        a.raw('    s_waitcnt vmcnt(0) lgkmcnt(0)')
        I('s_branch L_FIN')
    a.raw('    s_waitcnt vmcnt(1)')
    stamp(15)


vXR, vPv = 12, 0


def p2_setup():
    t0, t1 = 3, 4
    I('s_and_b32 %s, %s, 7' % (sC, sH2))
    I('s_lshr_b32 %s, %s, 3' % (sB, sH2))
    I('s_mul_i32 %s, %s, %d' % (sH2, sB, 2 * 144 * 1024))
    I('s_and_b32 %s, %s, 1' % (sA, sW))
    I('s_mul_i32 %s, %s, %d' % (sD, sA, 144 * 1024))
    I('v_add_u32 v%d, %s, v%d' % (vH0, sD, vHo))
    I('s_xor_b32 %s, %s, %d' % (sD, sD, 144 * 1024))
    I('v_add_u32 v%d, %s, v%d' % (vH1, sD, vHo))
    I('s_lshl_b32 %s, %s, 1' % (sD, sB))
    I('s_add_u32 %s, %s, %s' % (sD, sD, sA))
    I('s_lshl_b32 %s, %s, 5' % (sD, sD))
    I('v_and_b32 v%d, 31, v%d' % (t0, vL))
    I('v_add_u32 v%d, %s, v%d' % (t0, sD, t0))
    I('v_mul_u32_u24 v%d, 896, v%d' % (t0, t0))
    I('v_lshrrev_b32 v%d, 5, v%d' % (t1, vL))
    I('v_lshl_add_u32 v%d, v%d, 4, v%d' % (t0, t1, t0))
    I('s_lshl_b32 %s, %s, 7' % (sC, sC))
    I('s_bfe_u32 %s, %s, 0x10001' % (sD, sW))
    I('s_lshl_b32 %s, %s, 6' % (sD, sD))
    I('s_add_u32 %s, %s, %s' % (sC, sC, sD))
    I('s_lshr_b32 %s, %s, 2' % (sD, sW))
    I('s_lshl_b32 %s, %s, 5' % (sD, sD))
    I('s_add_u32 %s, %s, %s' % (sC, sC, sD))
    I('v_add_u32 v%d, %s, v%d' % (vOo, sC, t0))
    I('buffer_load_dwordx4 %s, v%d, %s, 0 offen' % (vr(vXR, 4), vOo, srd(rX)))
    I('s_lshr_b32 %s, %s, 1' % (sC, sB))
    I('s_and_b32 %s, %s, 1' % (sB, sB))
    I('s_lshl_b32 %s, %s, 4' % (sC, sC))
    I('s_lshr_b32 %s, %s, 1' % (sD, sW))
    I('s_lshl_b32 %s, %s, 2' % (sD, sD))
    I('s_add_u32 %s, %s, %s' % (sC, sC, sD))
    I('s_add_u32 %s, %s, %s' % (sC, sC, sA))
    I('s_lshl_b32 %s, %s, 7' % (sC, sC))
    I('s_add_u32 %s, %s, 0x%x' % (sC, sC, WS_FL))
    I('s_lshl_b32 %s, %s, 2' % (sB, sB))
    I('s_add_u32 %s, %s, %s' % (sC, sC, sB))
    I('v_and_b32 v%d, 3, v%d' % (t0, vL))
    I('v_lshl_add_u32 v%d, v%d, 3, %s' % (vPo, t0, sC))
    I('s_add_u32 %s, %s, %s' % (sC, sC, sB))
    I('s_add_u32 %s, %s, 256' % (sC, sC))
    I('v_and_b32 v%d, 1, v%d' % (t0, vL))
    I('v_bfe_u32 v%d, v%d, 1, 1' % (t1, vL))
    I('v_lshlrev_b32 v%d, 2, v%d' % (t0, t0))
    I('v_lshl_add_u32 v%d, v%d, 4, v%d' % (t0, t1, t0))
    I('v_add_u32 v%d, %s, v%d' % (t0, sC, t0))
    I('v_cmp_gt_u32 vcc, 4, v%d' % vL)
    I('v_cndmask_b32 v%d, v%d, v%d, vcc' % (vPo, t0, vPo))


def h_poll():
    I('buffer_load_dword v%d, v%d, %s, 0 offen sc1' % (vPv, vPo, srd(rWS)))


def h_stream():
    a.label('L_H')
    a.forget()
    issue = h_poll

    def need(mask, val):
        def test():
            I('v_cmp_le_u32 vcc, %d, v%d' % (val, vPv))
            I('s_and_b32 %s, vcc_lo, 0x%x' % (sA, mask))
            I('s_cmp_eq_u32 %s, 0x%x' % (sA, mask))
        spin_check(issue, test)

    def load(i):
        kind, j = kinfo(i)
        G = 3 if kind == 'F' else 4
        if j % G == 0:
            if kind == 'O':
                I('s_lshl_b32 %s, %s, 12' % (sE, sW))
                I('s_add_u32 %s, %s, %d' % (sE, sE, 112 * 1024))
            elif kind == 'F':
                fstep(sE, j)
                I('s_lshl_b32 %s, %s, 10' % (sE, sE))
            else:
                I('s_lshl_b32 %s, %s, 10' % (sE, sKA))
            I('s_add_u32 %s, %s, %s' % (sE, sE, sH2))
        for tt, v in enumerate((vH0, vH1)):
            I('buffer_load_dwordx4 %s, v%d, %s, %s offen offset:%d%s'
              % (vr(HB + 8 * (i % 4) + 4 * tt, 4), v, srd(rWS), sE, 1024 * (j % G), ' sc1' if OPT['hsc'] else ''))

    gates = {0: (0xf0, 1), 2: (0x0f, 1), 14: (0xf0, 2)}

    def gated_load(i):
        if i in gates:
            need(*gates[i])
            if i == 2:
                stamp(16)
            if i == 14:
                stamp(17)
        load(i)
        if i == 11:
            issue()
    for i in range(4):
        gated_load(i)
    for i in range(18):
        for tt in range(2):
            for nn in range(2):
                I(mfma(A2 + 16 * (2 * nn + tt), W2F + 8 * i + 4 * nn, HB + 8 * (i % 4) + 4 * tt, '0' if i == 0 else None))
        if i + 4 < 18:
            gated_load(i + 4)
    stamp(18)
    piece = [None] + [16384 * r for r in (0, 3, 4, 5, 7, 8, 9)]
    I('s_lshl_b32 %s, %s, 1' % (sA, sMB))
    I('v_add_u32 v2, %s, v%d' % (sA, vHo))
    I('v_add_u32 v3, 65536, v2')
    I('v_add_u32 v4, 131072, v2')

    def areg(q, base):
        p = piece[q]
        return base + (p >> 16), p & 0xffff
    for q in range(1, 8):
        v, o = areg(q, 2)
        r = A2 + 16 * (q & 3) + 8 * (q >> 2)
        I('ds_write_b128 v%d, %s offset:%d' % (v, vr(r, 4), o))
        I('ds_write_b128 v%d, %s offset:%d' % (v, vr(r + 4, 4), o + 1024))
    for q in range(1, 8):
        I('v_xor_b32 v%d, %d, v%d' % (16 + q, 2048 * q, areg(q, 2)[0]))
    X = 32
    for i in range(4):
        I('v_lshlrev_b32 v%d, 16, v%d' % (X + 2 * i, vXR + i))
        I('v_and_b32 v%d, 0xffff0000, v%d' % (X + 2 * i + 1, vXR + i))
    a.wait(lg=0)
    I('s_barrier')
    stamp(19)
    R = 48
    for q in range(1, 8):
        o = areg(q, 2)[1]
        I('ds_read_b128 %s, v%d offset:%d' % (vr(R + 8 * q, 4), 16 + q, o))
        I('ds_read_b128 %s, v%d offset:%d' % (vr(R + 8 * q + 4, 4), 16 + q, o + 1024))
    K = A2
    for q in range(1, 8):
        for i in range(0, 8, 2):
            I('v_pk_add_f32 %s, %s, %s' % (vr(K + i, 2), vr(K + i, 2), vr(R + 8 * q + i, 2)))
    for i in range(4):
        I('v_permlane32_swap_b32 v%d, v%d' % (K + i, K + 4 + i))
    for i in range(8):
        I('v_fmac_f32 v%d, %s, v%d' % (X + i, f32(1.0 / HS), K + i))
    for i in range(4):
        I('v_cvt_pk_bf16_f32 v%d, v%d, v%d' % (X + 8 + i, X + 2 * i, X + 2 * i + 1))
    I('buffer_store_dwordx4 %s, v%d, %s, 0 offen' % (vr(X + 8, 4), vOo, srd(rOUT)))
    stamp(20)


def main():
    k1 = NAME + '_kernel'
    out = '; generated by gen/g2.py (hand-designed schedule; see gen/NOTES.md)\n'
    out += '; @launch grid=(256,1,1) block=(512,1,1) lds=163840\n'
    out += '.amdgcn_target "amdgcn-amd-amdhsa--gfx950"\n.text\n'
    a.raw('.globl %s\n.p2align 8\n.type %s,@function\n%s:\n' % (k1, k1, k1))
    prologue()
    path_F()
    path_A()
    h_stream()
    a.label('L_FIN')
    a.forget()
    stamp_flush()
    if OPT['dbgt']:
        a.raw('    s_waitcnt vmcnt(0)')
        I('s_memtime s[92:93]')
        I('s_memrealtime s[94:95]')
        a.raw('    s_waitcnt lgkmcnt(0)')
        I('s_sub_u32 s92, s92, s96')
        I('s_not_b32 s98, s98')
        I('v_mov_b32 v2, s94')
        I('v_writelane_b32 v2, s98, 1')
        I('v_writelane_b32 v2, s92, 2')
        I('v_lshlrev_b32 v3, 2, v%d' % vL)
        I('s_lshl_b32 %s, s2, 3' % sE)
        I('s_add_u32 %s, %s, %s' % (sE, sE, sW))
        I('s_lshl_b32 %s, %s, 8' % (sE, sE))
        I('s_add_u32 %s, %s, 0x%x' % (sE, sE, WS_TM))
        I('buffer_store_dword v2, v3, %s, %s offen' % (srd(rWS), sE))
    a.label('L_END')
    I('s_endpgm')
    for b in slow_blocks:
        emit_slow(*b)
    out += a.text()
    out += '''.section .rodata,"a"
.p2align 6
.amdhsa_kernel %s
  .amdhsa_next_free_vgpr 256
  .amdhsa_next_free_sgpr 102
  .amdhsa_accum_offset 256
  .amdhsa_group_segment_fixed_size 0
  .amdhsa_kernarg_size 88
  .amdhsa_user_sgpr_count 2
  .amdhsa_user_sgpr_kernarg_segment_ptr 1
  .amdhsa_system_sgpr_workgroup_id_x 1
.end_amdhsa_kernel
''' % k1
    open(sys.argv[1], 'w').write(out)


main()
```
